```python
import torch

def _softmax(x, axis=-1):
    return torch.softmax(x, dim=axis)
def _gelu(x):
    return torch.nn.functional.gelu(x, approximate="tanh")
def _silu(x):
    return torch.nn.functional.silu(x)
def _sigmoid(x):
    return torch.sigmoid(x)
def _layernorm(x, axis=-1, eps=1e-5):
    m = x.mean(dim=axis, keepdim=True)
    v = x.var(dim=axis, keepdim=True, unbiased=False)
    return (x - m) / torch.sqrt(v + eps)
def _scatter_add(tgt, idx, src, axis=0):
    return tgt.clone().index_add_(axis, idx, src)
def _segment_sum(src, seg, n):
    out = torch.zeros((n,) + src.shape[1:], dtype=src.dtype)
    return out.index_add_(0, seg, src)
def _pad(x, pw):
    flat = tuple(v for pair in reversed(pw) for v in pair)
    return torch.nn.functional.pad(x, flat)

kernel_name = 'standalone__geglu_ffn__prompt'

def setup_inputs():

    _w = (lambda a: (lambda t: t.to(torch.bfloat16) if t.is_floating_point() else t)(torch.as_tensor(a)))
    B, S, D, F = 1, 2048, 1024, 3584
    return {
        "x": _w((lambda *s: torch.randn(*s, dtype=torch.bfloat16) * 0.05)(B, S, D)),
        "w_gate": _w((lambda *s: torch.randn(*s, dtype=torch.bfloat16) * 0.05)(D, F)),
        "w_up": _w((lambda *s: torch.randn(*s, dtype=torch.bfloat16) * 0.05)(D, F)),
        "w_down": _w((lambda *s: torch.randn(*s, dtype=torch.bfloat16) * 0.05)(F, D)),
    }

def reference(x, w_gate, w_up, w_down):
    return (_gelu(x @ w_gate) * (x @ w_up)) @ w_down
```

```python
import sys

S, D, F = 2048, 1024, 3584
H_BYTES = S * F * 2

class Sim:
    def __init__(self):
        self.emit = False
        self.lines = []
        self.vm = []; self.lg = []
        self.vmN = {}; self.lgN = {}
    def e(self, s):
        if self.emit: self.lines.append("  " + s)
    def label(self, s):
        if self.emit: self.lines.append(s + ":")
    def vm_issue(self, tag):
        if not self.emit: self.vm.append(tag)
    def lg_issue(self, tag):
        if not self.emit: self.lg.append(tag)
    def _n(self, q, tags):
        idx = -1
        for t in tags:
            for i in range(len(q) - 1, -1, -1):
                if q[i] == t:
                    idx = max(idx, i); break
            else:
                raise KeyError(("tag never issued", t))
        return len(q) - 1 - idx
    def wait(self, site, vm=None, lg=None):
        if not self.emit:
            if vm is not None:
                n = 0 if vm == 'all' else self._n(self.vm, vm)
                self.vmN[site] = min(self.vmN.get(site, 1 << 30), n)
            if lg is not None:
                n = 0 if lg == 'all' else self._n(self.lg, lg)
                self.lgN[site] = min(self.lgN.get(site, 1 << 30), n)
            return
        parts = []
        if vm is not None and self.vmN[site] <= 63: parts.append("vmcnt(%d)" % self.vmN[site])
        if lg is not None: parts.append("lgkmcnt(%d)" % min(self.lgN[site], 15))
        if parts: self.e("s_waitcnt " + " ".join(parts))

def interleave(g, main, extra):
    for i, m in enumerate(main):
        g.e(m)
        for f in extra.get(i, []):
            f()

G1_SLOT = 30720
G1_NSLOT = 5
G1_LDS = G1_SLOT * G1_NSLOT
G1_STEPS = 32

def gemm1(g, P):
    ACC = 16
    def acc(mi, nj): return ACC + (mi * 7 + nj) * 4
    T0 = 128
    def xf(b, mi): return b * 44 + mi * 4
    def wf(b, nj): return b * 44 + 16 + nj * 4
    V_LANE, V_XVO, V_WVO, V_XRB, V_WRB, V_XRD, V_WRD, V_T1, V_T2, V_T3 = 1, 2, 3, 4, 5, 6, 7, 8, 9, 10
    e = g.e
    g.label("gemm1_kernel")
    e("s_cmp_ge_u32 s2, 256")
    e("s_cbranch_scc1 G1_END")
    e("s_load_dwordx4 s[4:7], s[0:1], 0")
    e("s_load_dwordx2 s[8:9], s[0:1], 16")
    e("s_load_dwordx2 s[10:11], s[0:1], 48")
    e("v_lshrrev_b32 v%d, 6, v0" % V_T1)
    e("v_and_b32 v%d, 63, v0" % V_LANE)
    e("s_nop 0")
    e("v_readfirstlane_b32 s26, v%d" % V_T1)
    e("s_and_b32 s40, s2, 7")
    e("s_lshr_b32 s41, s2, 3")
    e("s_and_b32 s42, s40, 1")
    e("s_lshl_b32 s42, s42, 2")
    e("s_and_b32 s43, s41, 3")
    e("s_add_u32 s24, s42, s43")
    e("s_lshr_b32 s42, s40, 1")
    e("s_lshl_b32 s42, s42, 3")
    e("s_lshr_b32 s43, s41, 2")
    e("s_add_u32 s25, s42, s43")
    e("s_and_b32 s27, s26, 3")
    e("s_lshr_b32 s28, s26, 2")
    e("s_waitcnt lgkmcnt(0)")
    e("s_mov_b32 s12, s4"); e("s_and_b32 s13, s5, 0xffff"); e("s_mov_b32 s14, %d" % (S * D * 2)); e("s_mov_b32 s15, 0x00020000")
    e("s_cmp_eq_u32 s28, 0")
    e("s_cselect_b32 s16, s6, s8"); e("s_cselect_b32 s17, s7, s9"); e("s_and_b32 s17, s17, 0xffff")
    e("s_mov_b32 s18, %d" % (D * F * 2)); e("s_mov_b32 s19, 0x00020000")
    e("s_mov_b32 s20, s10"); e("s_and_b32 s21, s11, 0xffff"); e("s_mov_b32 s22, %d" % H_BYTES); e("s_mov_b32 s23, 0x00020000")
    e("s_mov_b32 s38, %d" % (S * D * 2)); e("s_mov_b32 s39, %d" % (D * F * 2))
    e("s_mov_b32 s36, -1"); e("s_mov_b32 s37, 0x00ffffff")
    e("v_lshrrev_b32 v%d, 5, v%d" % (V_T1, V_LANE))
    e("v_mul_u32_u24 v%d, 3, v%d" % (V_T1, V_T1))
    e("v_and_b32 v%d, 3, v%d" % (V_T2, V_LANE))
    e("v_xor_b32 v%d, v%d, v%d" % (V_T2, V_T2, V_T1))
    e("v_lshlrev_b32 v%d, 4, v%d" % (V_T2, V_T2))
    e("v_lshrrev_b32 v%d, 2, v%d" % (V_T1, V_LANE))
    e("v_lshl_add_u32 v%d, v%d, 11, v%d" % (V_XVO, V_T1, V_T2))
    e("v_mul_u32_u24 v%d, 37, v%d" % (V_T1, V_LANE))
    e("v_lshrrev_b32 v%d, 9, v%d" % (V_T1, V_T1))
    e("v_mul_u32_u24 v%d, 14, v%d" % (V_T2, V_T1))
    e("v_sub_u32 v%d, v%d, v%d" % (V_T2, V_LANE, V_T2))
    e("v_lshlrev_b32 v%d, 4, v%d" % (V_T2, V_T2))
    e("v_mul_u32_u24 v%d, 7168, v%d" % (V_T1, V_T1))
    e("v_add_u32 v%d, v%d, v%d" % (V_WVO, V_T1, V_T2))
    e("v_and_b32 v%d, 15, v%d" % (V_T1, V_LANE))
    e("v_lshrrev_b32 v%d, 3, v%d" % (V_T2, V_T1))
    e("v_mul_u32_u24 v%d, 3, v%d" % (V_T2, V_T2))
    e("v_lshrrev_b32 v%d, 4, v%d" % (V_T3, V_LANE))
    e("v_xor_b32 v%d, v%d, v%d" % (V_T2, V_T2, V_T3))
    e("v_lshlrev_b32 v%d, 4, v%d" % (V_T2, V_T2))
    e("v_lshl_add_u32 v%d, v%d, 6, v%d" % (V_XRB, V_T1, V_T2))
    e("s_lshl_b32 s40, s27, 12")
    e("v_add_u32 v%d, s40, v%d" % (V_XRB, V_XRB))
    e("v_lshrrev_b32 v%d, 2, v%d" % (V_T1, V_LANE))
    e("v_mul_u32_u24 v%d, 224, v%d" % (V_T1, V_T1))
    e("v_and_b32 v%d, 3, v%d" % (V_T2, V_LANE))
    e("v_lshl_add_u32 v%d, v%d, 3, v%d" % (V_WRB, V_T2, V_T1))
    e("s_mul_i32 s40, s28, 7168")
    e("s_add_u32 s40, s40, 16384")
    e("v_add_u32 v%d, s40, v%d" % (V_WRB, V_WRB))
    e("s_lshl_b32 s40, s24, 19")
    e("s_lshl_b32 s41, s26, 16")
    e("s_add_u32 s29, s40, s41")
    e("s_add_u32 s30, s29, 32768")
    e("s_and_b32 s40, s27, 1")
    e("s_lshl_b32 s40, s40, 4")
    e("s_lshr_b32 s41, s27, 1")
    e("s_lshl_b32 s41, s41, 2")
    e("s_add_u32 s40, s40, s41")
    e("s_mul_i32 s40, s40, 7168")
    e("s_mul_i32 s41, s25, 224")
    e("s_add_u32 s31, s40, s41")
    e("s_add_u32 s32, s31, %d" % (8 * 7168))
    e("s_lshl_b32 s44, s26, 11")
    e("s_mul_i32 s45, s28, 7168")
    e("s_mul_i32 s40, s27, 1792")
    e("s_add_u32 s45, s45, s40")
    e("s_add_u32 s45, s45, 16384")

    def dma(stage, which):
        def f():
            if which == 0:
                e("s_add_u32 m0, s33, s44")
                e("s_nop 0")
                e("buffer_load_dwordx4 v%d, s[12:15], s29 offen lds" % V_XVO)
                e("s_add_u32 s29, s29, 64")
            elif which == 1:
                e("s_add_u32 m0, s33, s44")
                e("s_add_u32 m0, m0, 1024")
                e("s_nop 0")
                e("buffer_load_dwordx4 v%d, s[12:15], s30 offen lds" % V_XVO)
                e("s_add_u32 s30, s30, 64")
            elif which == 2:
                e("s_add_u32 m0, s33, s45")
                e("s_mov_b64 exec, s[36:37]")
                e("buffer_load_dwordx4 v%d, s[16:19], s31 offen lds" % V_WVO)
                e("s_mov_b64 exec, -1")
                e("s_add_u32 s31, s31, %d" % (32 * 7168))
            else:
                e("s_add_u32 m0, s33, s45")
                e("s_add_u32 m0, m0, 896")
                e("s_mov_b64 exec, s[36:37]")
                e("buffer_load_dwordx4 v%d, s[16:19], s32 offen lds" % V_WVO)
                e("s_mov_b64 exec, -1")
                e("s_add_u32 s32, s32, %d" % (32 * 7168))
            g.vm_issue(('d', stage, which))
        return f
    def adv_slot(reg):
        e("s_add_u32 %s, %s, %d" % (reg, reg, G1_SLOT))
        e("s_cmp_ge_u32 %s, %d" % (reg, G1_LDS))
        e("s_cselect_b32 %s, 0, %s" % (reg, reg))
    def rd_x(step, mi):
        def f():
            e("ds_read_b128 a[%d:%d], v%d offset:%d" % (xf(step & 1, mi), xf(step & 1, mi) + 3, V_XRD, mi * 1024))
            g.lg_issue(('x', step, mi))
        return f
    def rd_w(step, nj, q):
        def f():
            r = wf(step & 1, nj) + 2 * q
            e("ds_read_b64_tr_b16 a[%d:%d], v%d offset:%d" % (r, r + 1, V_WRD, q * 3584 + nj * 32))
            g.lg_issue(('w', step, nj, q))
        return f

    e("s_mov_b32 s33, 0")
    for st in range(G1_NSLOT):
        for w in range(4): dma(st, w)()
        adv_slot("s33")
    for r in range(ACC, ACC + 112): e("v_mov_b32 v%d, 0" % r)
    e("s_mov_b32 s34, 0")
    e("s_mov_b32 s35, %d" % G1_NSLOT)
    g.wait('p0', vm=[('d', 0, w) for w in range(4)])
    e("s_barrier")
    e("v_add_u32 v%d, s34, v%d" % (V_XRD, V_XRB))
    e("v_add_u32 v%d, s34, v%d" % (V_WRD, V_WRB))
    for mi in range(4): rd_x(0, mi)()
    for nj in range(7):
        for q in range(2): rd_w(0, nj, q)()
    adv_slot("s34")

    def step(s, par):
        b = par
        g.wait(('s', par), vm=[('d', s + 1, w) for w in range(4)], lg='all')
        e("s_barrier")
        e("v_add_u32 v%d, s34, v%d" % (V_XRD, V_XRB))
        e("v_add_u32 v%d, s34, v%d" % (V_WRD, V_WRB))
        e("s_cmp_lt_u32 s35, %d" % G1_STEPS)
        e("s_cselect_b32 s14, s38, 0")
        e("s_cselect_b32 s18, s39, 0")
        e("s_add_u32 s35, s35, 1")
        mf = []
        for nj in range(7):
            for mi in range(4):
                a = acc(mi, nj)
                mf.append("v_mfma_f32_16x16x32_bf16 v[%d:%d], a[%d:%d], a[%d:%d], v[%d:%d]" %
                          (a, a + 3, wf(b, nj), wf(b, nj) + 3, xf(b, mi), xf(b, mi) + 3, a, a + 3))
        extra = {}
        reads = [rd_x(s + 1, mi) for mi in range(4)] + [rd_w(s + 1, nj, q) for nj in range(7) for q in range(2)]
        for i, r in enumerate(reads):
            extra.setdefault(P['g1_rd0'] + i, []).append(r)
        for w in range(4):
            extra.setdefault(P['g1_dma'][w], []).append(dma(s + G1_NSLOT, w))
        interleave(g, mf, extra)
        adv_slot("s33")
        adv_slot("s34")

    if g.emit:
        e("s_mov_b32 s46, 0")
        g.label("G1_LOOP")
        step(0, 0); step(1, 1)
        e("s_add_u32 s46, s46, 2")
        e("s_cmp_lt_u32 s46, %d" % G1_STEPS)
        e("s_cbranch_scc1 G1_LOOP")
    else:
        for s in range(G1_STEPS): step(s, s & 1)
    e("s_waitcnt vmcnt(0) lgkmcnt(0)")
    e("s_barrier")
    e("s_mul_i32 s40, s26, 14336")
    e("v_lshlrev_b32 v%d, 4, v%d" % (V_T1, V_LANE))
    e("v_add_u32 v%d, s40, v%d" % (V_T2, V_T1))
    e("s_xor_b32 s41, s26, 4")
    e("s_mul_i32 s41, s41, 14336")
    e("v_add_u32 v%d, s41, v%d" % (V_T3, V_T1))
    e("s_nop 7"); e("s_nop 7")
    e("s_cmp_eq_u32 s28, 0")
    e("s_cbranch_scc0 G1_EP1")
    def ep(mat):
        own = [2 * mat, 2 * mat + 1]; snd = [2 - 2 * mat, 3 - 2 * mat]
        for k, mi in enumerate(snd):
            for nj in range(7):
                a = acc(mi, nj)
                e("ds_write_b128 v%d, v[%d:%d] offset:%d" % (V_T2, a, a + 3, (k * 7 + nj) * 1024))
        e("s_waitcnt lgkmcnt(0)")
        e("s_barrier")
        for k, mi in enumerate(snd):
            for nj in range(7):
                a = acc(mi, nj)
                e("ds_read_b128 v[%d:%d], v%d offset:%d" % (a, a + 3, V_T3, (k * 7 + nj) * 1024))
        C1, C0, ONE = T0, T0 + 2, T0 + 4
        c = -2.0 * 0.7978845608028654 * 1.4426950408889634
        import struct
        def f2u(x): return struct.unpack("<I", struct.pack("<f", x))[0]
        for r in (C1, C1 + 1): e("v_mov_b32 v%d, 0x%08x" % (r, f2u(c * 0.044715)))
        for r in (C0, C0 + 1): e("v_mov_b32 v%d, 0x%08x" % (r, f2u(c)))
        for r in (ONE, ONE + 1): e("v_mov_b32 v%d, 1.0" % r)
        e("s_waitcnt lgkmcnt(0)")
        TT = T0 + 8
        pairs = []
        for k in range(2):
            for nj in range(7):
                for hf in range(2):
                    o = acc(own[k], nj) + 2 * hf; r = acc(snd[k], nj) + 2 * hf
                    gg, uu = (o, r) if mat == 0 else (r, o)
                    pairs.append((gg, uu, k, nj, hf))
        for b0 in range(0, len(pairs), 4):
            grp = pairs[b0:b0 + 4]
            for i, (gg, uu, k, nj, hf) in enumerate(grp):
                t = TT + 2 * i
                e("v_pk_mul_f32 v[%d:%d], v[%d:%d], v[%d:%d]" % (t, t + 1, gg, gg + 1, gg, gg + 1))
            for i, (gg, uu, k, nj, hf) in enumerate(grp):
                t = TT + 2 * i
                e("v_pk_fma_f32 v[%d:%d], v[%d:%d], v[%d:%d], v[%d:%d]" % (t, t + 1, t, t + 1, C1, C1 + 1, C0, C0 + 1))
            for i, (gg, uu, k, nj, hf) in enumerate(grp):
                t = TT + 2 * i
                e("v_pk_mul_f32 v[%d:%d], v[%d:%d], v[%d:%d]" % (t, t + 1, t, t + 1, gg, gg + 1))
            for i in range(len(grp)):
                t = TT + 2 * i
                e("v_exp_f32 v%d, v%d" % (t, t)); e("v_exp_f32 v%d, v%d" % (t + 1, t + 1))
            for i, (gg, uu, k, nj, hf) in enumerate(grp):
                e("v_pk_mul_f32 v[%d:%d], v[%d:%d], v[%d:%d]" % (gg, gg + 1, gg, gg + 1, uu, uu + 1))
            for i in range(len(grp)):
                t = TT + 2 * i
                e("v_pk_add_f32 v[%d:%d], v[%d:%d], v[%d:%d]" % (t, t + 1, t, t + 1, ONE, ONE + 1))
            for i in range(len(grp)):
                t = TT + 2 * i
                e("v_rcp_f32 v%d, v%d" % (t, t)); e("v_rcp_f32 v%d, v%d" % (t + 1, t + 1))
            e("s_nop 0")
            for i, (gg, uu, k, nj, hf) in enumerate(grp):
                t = TT + 2 * i
                e("v_pk_mul_f32 v[%d:%d], v[%d:%d], v[%d:%d]" % (t, t + 1, t, t + 1, gg, gg + 1))
            for i, (gg, uu, k, nj, hf) in enumerate(grp):
                t = TT + 2 * i
                d = acc(own[k], 0) + nj * 2 + hf
                e("v_cvt_pk_bf16_f32 v%d, v%d, v%d" % (d, t, t + 1))
        e("s_lshl_b32 s40, s24, 4")
        e("s_lshl_b32 s41, s27, 2")
        e("s_add_u32 s40, s40, s41")
        e("s_add_u32 s40, s40, %d" % own[0])
        e("s_mul_i32 s40, s40, 114688")
        e("s_mul_i32 s41, s25, 7")
        e("s_lshr_b32 s42, s41, 1")
        e("s_lshl_b32 s42, s42, 10")
        e("s_add_u32 s40, s40, s42")
        e("s_add_u32 s43, s40, 114688")
        e("s_and_b32 s41, s25, 1")
        e("s_cmp_eq_u32 s41, 0")
        e("s_cbranch_scc0 G1_ODD%d" % mat)
        for k, so in ((0, "s40"), (1, "s43")):
            d = acc(own[k], 0)
            for pi in range(3):
                e("buffer_store_dwordx4 v[%d:%d], v%d, s[20:23], %s offen offset:%d" % (d + 4 * pi, d + 4 * pi + 3, V_T1, so, pi * 1024))
            e("buffer_store_dwordx2 v[%d:%d], v%d, s[20:23], %s offen offset:%d" % (d + 12, d + 13, V_T1, so, 3 * 1024))
        e("s_branch G1_END")
        g.label("G1_ODD%d" % mat)
        for k, so in ((0, "s40"), (1, "s43")):
            d = acc(own[k], 0)
            e("buffer_store_dwordx2 v[%d:%d], v%d, s[20:23], %s offen offset:8" % (d, d + 1, V_T1, so))
            for pi in range(3):
                e("buffer_store_dwordx4 v[%d:%d], v%d, s[20:23], %s offen offset:%d" % (d + 2 + 4 * pi, d + 2 + 4 * pi + 3, V_T1, so, (pi + 1) * 1024))
        e("s_branch G1_END")
    ep(0)
    g.label("G1_EP1")
    ep(1)
    g.label("G1_END")
    e("s_endpgm")

G2_SLOT = 32768
G2_NSLOT = 4
G2_LDS = G2_SLOT * G2_NSLOT
G2_STAGES = 14
G2_US = 56
G2_RING = 8

def gemm2(g, P):
    e = g.e
    ACC = 16
    def acc(mi, nj): return ACC + (mi * 4 + nj) * 4
    def hf(u, mi): return (u % G2_RING) * 8 + mi * 4
    def wf(b, nj): return 64 + b * 16 + nj * 4
    V_LANE, V_WVO, V_HVO, V_T1, V_T2, V_T3 = 1, 2, 3, 4, 5, 6
    V_RB = 8
    V_RD = 12
    g.label("gemm2_kernel")
    e("s_cmp_ge_u32 s2, 256")
    e("s_cbranch_scc1 G2_END")
    e("s_load_dwordx4 s[4:7], s[0:1], 24")
    e("s_load_dwordx2 s[10:11], s[0:1], 48")
    e("v_lshrrev_b32 v%d, 6, v0" % V_T1)
    e("v_and_b32 v%d, 63, v0" % V_LANE)
    e("s_nop 0")
    e("v_readfirstlane_b32 s26, v%d" % V_T1)
    e("s_and_b32 s40, s2, 7")
    e("s_lshr_b32 s41, s2, 3")
    e("s_and_b32 s42, s40, 3")
    e("s_lshl_b32 s42, s42, 2")
    e("s_and_b32 s43, s41, 3")
    e("s_add_u32 s24, s42, s43")
    e("s_lshr_b32 s42, s40, 2")
    e("s_lshl_b32 s42, s42, 3")
    e("s_lshr_b32 s43, s41, 2")
    e("s_add_u32 s25, s42, s43")
    e("s_and_b32 s27, s26, 3")
    e("s_lshr_b32 s28, s26, 2")
    e("s_waitcnt lgkmcnt(0)")
    e("s_mov_b32 s12, s4"); e("s_and_b32 s13, s5, 0xffff"); e("s_mov_b32 s14, %d" % (F * D * 2)); e("s_mov_b32 s15, 0x00020000")
    e("s_mov_b32 s16, s10"); e("s_and_b32 s17, s11, 0xffff"); e("s_mov_b32 s18, %d" % H_BYTES); e("s_mov_b32 s19, 0x00020000")
    e("s_mov_b32 s20, s6"); e("s_and_b32 s21, s7, 0xffff"); e("s_mov_b32 s22, %d" % (S * D * 2)); e("s_mov_b32 s23, 0x00020000")
    e("s_mov_b32 s38, %d" % (F * D * 2)); e("s_mov_b32 s39, %d" % H_BYTES)
    e("v_lshrrev_b32 v%d, 3, v%d" % (V_T1, V_LANE))
    e("v_lshrrev_b32 v%d, 4, v%d" % (V_T2, V_LANE))
    e("v_lshlrev_b32 v%d, 1, v%d" % (V_T2, V_T2))
    e("v_and_b32 v%d, 7, v%d" % (V_T3, V_LANE))
    e("v_xor_b32 v%d, v%d, v%d" % (V_T2, V_T2, V_T3))
    e("v_lshlrev_b32 v%d, 4, v%d" % (V_T2, V_T2))
    e("v_lshl_add_u32 v%d, v%d, 11, v%d" % (V_WVO, V_T1, V_T2))
    e("v_lshlrev_b32 v%d, 4, v%d" % (V_HVO, V_LANE))
    e("v_lshrrev_b32 v%d, 3, v%d" % (V_T1, V_LANE))
    e("v_and_b32 v%d, 3, v%d" % (V_T1, V_T1))
    e("v_lshlrev_b32 v%d, 1, v%d" % (V_T1, V_T1))
    e("v_lshrrev_b32 v%d, 2, v%d" % (V_T2, V_LANE))
    e("v_lshlrev_b32 v%d, 7, v%d" % (V_T2, V_T2))
    e("v_and_b32 v%d, 3, v%d" % (V_T3, V_LANE))
    e("v_lshl_add_u32 v%d, v%d, 3, v%d" % (V_T2, V_T3, V_T2))
    e("s_lshl_b32 s40, s28, 12")
    e("v_add_u32 v%d, s40, v%d" % (V_T2, V_T2))
    for nj in range(4):
        e("v_xor_b32 v%d, %d, v%d" % (V_T3, 2 * nj, V_T1))
        e("v_lshl_add_u32 v%d, v%d, 4, v%d" % (V_RB + nj, V_T3, V_T2))
    e("s_lshl_b32 s40, s26, 16")
    e("s_lshl_b32 s41, s25, 7")
    e("s_add_u32 s29, s40, s41")
    e("s_lshl_b32 s44, s26, 12")
    e("s_lshl_b32 s40, s24, 3")
    e("s_lshl_b32 s41, s27, 1")
    e("s_add_u32 s40, s40, s41")
    e("s_mul_i32 s40, s40, 114688")
    e("s_lshl_b32 s41, s28, 10")
    e("s_add_u32 s30, s40, s41")
    e("s_add_u32 s31, s30, 114688")

    def dma(stage, j):
        def f():
            e("s_add_u32 m0, s33, s44")
            if j: e("s_add_u32 m0, m0, %d" % (j * 1024))
            if j: e("s_add_u32 s40, s29, %d" % (j * 16384))
            else: e("s_nop 0")
            e("buffer_load_dwordx4 v%d, s[12:15], %s offen lds" % (V_WVO, "s40" if j else "s29"))
            if j == 3: e("s_add_u32 s29, s29, %d" % (256 * 2048))
            g.vm_issue(('d', stage, j))
        return f
    def ldh(u, mi):
        def f():
            r = hf(u, mi)
            so = "s30" if mi == 0 else "s31"
            e("buffer_load_dwordx4 a[%d:%d], v%d, s[16:19], %s offen" % (r, r + 3, V_HVO, so))
            e("s_add_u32 %s, %s, 2048" % (so, so))
            g.vm_issue(('h', u, mi))
        return f
    def rd_w(u, nj, q):
        def f():
            r = wf(u & 1, nj) + 2 * q
            e("ds_read_b64_tr_b16 a[%d:%d], v%d offset:%d" % (r, r + 1, V_RD + nj, ((u & 3) * 64 + 16 * q) * 128))
            g.lg_issue(('w', u, nj, q))
        return f
    def adv(reg):
        e("s_add_u32 %s, %s, %d" % (reg, reg, G2_SLOT))
        e("s_and_b32 %s, %s, %d" % (reg, reg, G2_LDS - 1))
    def set_rd():
        for nj in range(4): e("v_add_u32 v%d, s34, v%d" % (V_RD + nj, V_RB + nj))

    e("s_mov_b32 s33, 0")
    for j in range(4): dma(0, j)()
    adv("s33")
    for u in range(0, 4):
        for mi in range(2): ldh(u, mi)()
    for j in range(4): dma(1, j)()
    adv("s33")
    for u in range(4, G2_RING - 1):
        for mi in range(2): ldh(u, mi)()
    for j in range(4): dma(2, j)()
    adv("s33")
    for r in range(ACC, ACC + 32): e("v_mov_b32 v%d, 0" % r)
    e("s_mov_b32 s34, 0")
    e("s_mov_b32 s35, 3")
    e("s_mov_b32 s36, %d" % (G2_RING - 1))
    g.wait('p0', vm=[('d', 0, j) for j in range(4)])
    e("s_barrier")
    set_rd()
    for nj in range(4):
        for q in range(2): rd_w(0, nj, q)()

    def wstep(u, pos):
        b = u & 1
        last = (u & 3) == 3
        t = u >> 2
        if last:
            g.wait(('b', pos), vm=[('d', t + 1, j) for j in range(4)] + [('h', u, 0), ('h', u, 1)], lg='all')
            e("s_barrier")
            adv("s34")
            set_rd()
            e("s_cmp_lt_u32 s35, %d" % G2_STAGES)
            e("s_cselect_b32 s14, s38, 0")
            e("s_add_u32 s35, s35, 1")
        else:
            g.wait(('w', pos), vm=[('h', u, 0), ('h', u, 1)], lg=[('w', u, nj, q) for nj in range(4) for q in range(2)])
        e("s_cmp_lt_u32 s36, %d" % G2_US)
        e("s_cselect_b32 s18, s39, 0")
        e("s_add_u32 s36, s36, 1")
        mf = []
        for nj in range(4):
            for mi in range(2):
                a = acc(mi, nj)
                mf.append("v_mfma_f32_16x16x32_bf16 v[%d:%d], a[%d:%d], a[%d:%d], v[%d:%d]" %
                          (a, a + 3, wf(b, nj), wf(b, nj) + 3, hf(u, mi), hf(u, mi) + 3, a, a + 3))
        extra = {}
        reads = [rd_w(u + 1, nj, q) for nj in range(4) for q in range(2)]
        for i, r in enumerate(reads): extra.setdefault(i, []).append(r)
        extra.setdefault(1, []).append(ldh(u + G2_RING - 1, 0))
        extra.setdefault(5, []).append(ldh(u + G2_RING - 1, 1))
        if last:
            for j in range(4): extra.setdefault(2 * j, []).append(dma(t + 3, j))
        interleave(g, mf, extra)
        if last: adv("s33")

    if g.emit:
        e("s_mov_b32 s46, 0")
        g.label("G2_LOOP")
        for u in range(8): wstep(u, u)
        e("s_add_u32 s46, s46, 8")
        e("s_cmp_lt_u32 s46, %d" % G2_US)
        e("s_cbranch_scc1 G2_LOOP")
    else:
        for u in range(G2_US): wstep(u, u % 8)
    e("s_waitcnt vmcnt(0) lgkmcnt(0)")
    e("s_barrier")
    e("s_lshl_b32 s40, s26, 12")
    e("v_lshlrev_b32 v%d, 4, v%d" % (V_T1, V_LANE))
    e("v_add_u32 v%d, s40, v%d" % (V_T2, V_T1))
    e("s_xor_b32 s41, s26, 4")
    e("s_lshl_b32 s41, s41, 12")
    e("v_add_u32 v%d, s41, v%d" % (V_T3, V_T1))
    e("s_nop 7"); e("s_nop 7")
    e("s_cmp_eq_u32 s28, 0")
    e("s_cbranch_scc0 G2_EP1")
    def ep(kh):
        own, snd = kh, 1 - kh
        for nj in range(4):
            a = acc(snd, nj)
            e("ds_write_b128 v%d, v[%d:%d] offset:%d" % (V_T2, a, a + 3, nj * 1024))
        e("s_waitcnt lgkmcnt(0)")
        e("s_barrier")
        for nj in range(4):
            a = acc(snd, nj)
            e("ds_read_b128 v[%d:%d], v%d offset:%d" % (a, a + 3, V_T3, nj * 1024))
        e("v_and_b32 v%d, 15, v%d" % (V_T1, V_LANE))
        e("v_lshrrev_b32 v%d, 4, v%d" % (V_T2, V_LANE))
        e("v_lshlrev_b32 v%d, 3, v%d" % (V_T2, V_T2))
        e("v_lshl_add_u32 v%d, v%d, 11, v%d" % (V_T1, V_T1, V_T2))
        e("s_lshl_b32 s40, s24, 7")
        e("s_lshl_b32 s41, s27, 5")
        e("s_add_u32 s40, s40, s41")
        e("s_add_u32 s40, s40, %d" % (16 * own))
        e("s_lshl_b32 s40, s40, 11")
        e("s_lshl_b32 s41, s25, 7")
        e("s_add_u32 s40, s40, s41")
        e("s_waitcnt lgkmcnt(0)")
        for nj in range(4):
            a = acc(own, nj); r = acc(snd, nj)
            e("v_pk_add_f32 v[%d:%d], v[%d:%d], v[%d:%d]" % (a, a + 1, a, a + 1, r, r + 1))
            e("v_pk_add_f32 v[%d:%d], v[%d:%d], v[%d:%d]" % (a + 2, a + 3, a + 2, a + 3, r + 2, r + 3))
        for nj in range(4):
            a = acc(own, nj)
            e("v_cvt_pk_bf16_f32 v%d, v%d, v%d" % (a, a, a + 1))
            e("v_cvt_pk_bf16_f32 v%d, v%d, v%d" % (a + 1, a + 2, a + 3))
        for nj in range(4):
            a = acc(own, nj)
            e("buffer_store_dwordx2 v[%d:%d], v%d, s[20:23], s40 offen offset:%d" % (a, a + 1, V_T1, nj * 32))
        e("s_branch G2_END")
    ep(0)
    g.label("G2_EP1")
    ep(1)
    g.label("G2_END")
    e("s_endpgm")

HEADER = """; Kernarg layout for this problem (56 bytes, ptrs only, base s[0:1]):
; @launch kernel=gemm1_kernel grid=(256,1,1) block=(512,1,1) lds=%d
; @launch kernel=gemm2_kernel grid=(256,1,1) block=(512,1,1) lds=%d
.amdgcn_target "amdgcn-amd-amdhsa--gfx950"
.text
"""
def kd(name, nv, acc_off, ns=64):
    return """.amdhsa_kernel %s
  .amdhsa_next_free_vgpr %d
  .amdhsa_next_free_sgpr %d
  .amdhsa_accum_offset %d
  .amdhsa_group_segment_fixed_size 0
  .amdhsa_kernarg_size 56
  .amdhsa_user_sgpr_count 2
  .amdhsa_user_sgpr_kernarg_segment_ptr 1
  .amdhsa_system_sgpr_workgroup_id_x 1
.end_amdhsa_kernel
""" % (name, nv, ns, acc_off)

def build(P):
    out = [HEADER % (G1_LDS, G2_LDS)]
    for name, fn in (("gemm1_kernel", gemm1), ("gemm2_kernel", gemm2)):
        g = Sim()
        fn(g, P)
        g.emit = True
        fn(g, P)
        out.append(".globl %s\n.p2align 8\n.type %s,@function\n" % (name, name) + "\n".join(g.lines) + "\n")
    out.append('.section .rodata,"a"\n.p2align 6\n' + kd("gemm1_kernel", 240, 152) + ".p2align 6\n" + kd("gemm2_kernel", 160, 64))
    return "".join(out)

DEFAULT = dict(g1_rd0=0, g1_dma=[2, 9, 16, 23])
if __name__ == "__main__":
    P = dict(DEFAULT)
    txt = build(P)
    path = sys.argv[1] if len(sys.argv) > 1 else "standalone__geglu_ffn__prompt.s"
    open(path, "w").write(txt)
    print("wrote", path, len(txt))
```

```python
import sys

S, D, F = 2048, 1024, 3584
WREL_OFF = 0x1000000
H_BYTES = S * F * 2

class Sim:
    def __init__(self):
        self.emit = False
        self.lines = []
        self.vm = []; self.lg = []
        self.vmN = {}; self.lgN = {}
    def e(self, s):
        if self.emit:
            for sub in getattr(self, 'drop', ()):
                if sub in s: return
            self.lines.append("  " + s)
    def label(self, s):
        if self.emit: self.lines.append(s + ":")
    def vm_issue(self, tag):
        if not self.emit: self.vm.append(tag)
    def lg_issue(self, tag):
        if not self.emit: self.lg.append(tag)
    def _n(self, q, tags):
        idx = -1
        for t in tags:
            for i in range(len(q) - 1, -1, -1):
                if q[i] == t:
                    idx = max(idx, i); break
            else:
                raise KeyError(("tag never issued", t))
        return len(q) - 1 - idx
    def wait(self, site, vm=None, lg=None):
        if not self.emit:
            if vm is not None:
                n = 0 if vm == 'all' else self._n(self.vm, vm)
                self.vmN[site] = min(self.vmN.get(site, 1 << 30), n)
            if lg is not None:
                n = 0 if lg == 'all' else self._n(self.lg, lg)
                self.lgN[site] = min(self.lgN.get(site, 1 << 30), n)
            return
        parts = []
        if vm is not None and self.vmN[site] <= 63: parts.append("vmcnt(%d)" % self.vmN[site])
        if lg is not None: parts.append("lgkmcnt(%d)" % min(self.lgN[site], 15))
        if parts: self.e("s_waitcnt " + " ".join(parts))

def stamp(g, P, idx):
    if P.get('stamps'):
        g.e("s_memtime s[%d:%d]" % (66 + 2 * idx, 67 + 2 * idx))
        if idx == 0: g.e("s_memrealtime s[74:75]")
        if idx == 3: g.e("s_memrealtime s[76:77]")
def stamp_dump(g, P, wsreg, n):
    if not P.get('stamps'): return
    e = g.e
    e("s_waitcnt lgkmcnt(0) vmcnt(0)")
    e("s_add_u32 s60, %s, 0x8000000" % wsreg[0]); e("s_addc_u32 s61, %s, 0" % wsreg[1])
    e("s_mov_b32 s62, 0x1000000"); e("s_mov_b32 s63, 0x00020000")
    e("s_lshl_b32 s64, s2, 3"); e("s_add_u32 s64, s64, s26"); e("s_lshl_b32 s64, s64, 6")
    e("v_mov_b32 v11, 0")
    for i in range(n):
        e("v_mov_b32 v12, s%d" % (66 + 2 * i)); e("v_mov_b32 v13, s%d" % (67 + 2 * i))
        e("buffer_store_dwordx2 v[12:13], v11, s[60:63], s64 offen offset:%d" % (8 * i))
    e("s_waitcnt vmcnt(0)")

def interleave(g, main, extra):
    for f in extra.get(-1, []):
        f()
    for i, m in enumerate(main):
        if not getattr(g, 'nomfma', False): g.e(m)
        for f in extra.get(i, []):
            f()

G1_XSLOT = 32768; G1_NX = 3
G1_WSLOT = 14336; G1_NW = 4
G1_XB = G1_WSLOT * G1_NW
G1_LDS = G1_XB + G1_XSLOT * G1_NX
G1_STEPS = 32

def gemm1(g, P):
    ACC = 16
    def acc(mi, nj): return ACC + (mi * 7 + nj) * 4
    T0 = 128
    CPY = 152
    def xf(b, mi): return b * 44 + mi * 4
    def wf(b, nj): return b * 44 + 16 + nj * 4
    V_LANE, V_XVO, V_WVO, V_XRB, V_WRB, V_T1, V_T2, V_T3, V_PFX, V_PFW = 1, 2, 6, 7, 11, 12, 13, 14, 15, 0
    e = g.e
    g.label("gemm1_kernel")
    e("s_cmp_ge_u32 s2, 256")
    e("s_cbranch_scc1 G1_EXIT")
    stamp(g, P, 0)
    e("s_load_dwordx4 s[4:7], s[0:1], 0")
    e("s_load_dwordx4 s[8:11], s[0:1], 16")
    e("s_load_dwordx2 s[48:49], s[0:1], 48")
    e("v_lshrrev_b32 v%d, 6, v0" % V_T1)
    e("v_and_b32 v%d, 63, v0" % V_LANE)
    e("s_and_b32 s40, s2, 7")
    e("v_readfirstlane_b32 s26, v%d" % V_T1)
    e("s_lshr_b32 s41, s2, 3")
    e("s_and_b32 s42, s40, 1")
    e("s_lshl_b32 s42, s42, 2")
    e("s_and_b32 s43, s41, 3")
    e("s_add_u32 s24, s42, s43")
    e("s_lshr_b32 s42, s40, 1")
    e("s_lshl_b32 s42, s42, 3")
    e("s_lshr_b32 s43, s41, 2")
    e("s_add_u32 s25, s42, s43")
    e("s_and_b32 s27, s26, 3")
    e("s_lshr_b32 s28, s26, 2")
    e("v_mul_u32_u24 v%d, 37, v%d" % (V_T1, V_LANE))
    e("v_lshrrev_b32 v%d, 9, v%d" % (V_T1, V_T1))
    e("v_mul_u32_u24 v%d, 14, v%d" % (V_T2, V_T1))
    e("v_sub_u32 v%d, v%d, v%d" % (V_T2, V_LANE, V_T2))
    e("v_mul_u32_u24 v%d, 7168, v%d" % (V_T1, V_T1))
    e("v_lshl_add_u32 v%d, v%d, 4, v%d" % (V_WVO, V_T2, V_T1))
    e("v_lshrrev_b32 v%d, 3, v%d" % (V_T1, V_LANE))
    e("v_lshrrev_b32 v%d, 4, v%d" % (V_T2, V_LANE))
    e("v_and_b32 v%d, 7, v%d" % (V_T3, V_LANE))
    e("v_xor_b32 v%d, v%d, v%d" % (V_T2, V_T2, V_T3))
    e("v_lshlrev_b32 v%d, 4, v%d" % (V_T2, V_T2))
    e("v_lshl_add_u32 v%d, v%d, 11, v%d" % (V_XVO, V_T1, V_T2))
    e("v_xor_b32 v%d, 64, v%d" % (V_T1, V_XVO))
    e("v_add_u32 v%d, 16384, v%d" % (V_XVO + 1, V_T1))
    e("v_add_u32 v%d, 32768, v%d" % (V_XVO + 2, V_XVO))
    e("v_add_u32 v%d, 49152, v%d" % (V_XVO + 3, V_T1))
    e("s_lshl_b32 s40, s24, 19")
    e("s_lshl_b32 s41, s26, 16")
    e("s_add_u32 s29, s40, s41")
    e("s_and_b32 s40, s27, 1")
    e("s_lshl_b32 s40, s40, 4")
    e("s_lshr_b32 s41, s27, 1")
    e("s_lshl_b32 s41, s41, 2")
    e("s_add_u32 s40, s40, s41")
    e("s_mul_i32 s40, s40, 7168")
    e("s_mul_i32 s41, s25, 224")
    e("s_add_u32 s31, s40, s41")
    e("s_lshl_b32 s44, s26, 12")
    e("s_add_u32 s44, s44, %d" % G1_XB)
    e("s_mul_i32 s45, s28, 7168")
    e("s_mul_i32 s40, s27, 1792")
    e("s_add_u32 s45, s45, s40")
    e("s_mov_b32 s36, -1"); e("s_mov_b32 s37, 0x00ffffff")
    e("s_mov_b32 s14, %d" % (0 if (P.get('noload') or P.get('noload_a')) else S * D * 2)); e("s_mov_b32 s15, 0x00020000")
    e("s_mov_b32 s18, %d" % (0 if (P.get('noload') or P.get('noload_b')) else D * F * 2)); e("s_mov_b32 s19, 0x00020000")
    e("s_cmp_eq_u32 s28, 0")
    e("s_waitcnt lgkmcnt(0)")
    e("s_cselect_b32 s16, s6, s8"); e("s_cselect_b32 s17, s7, s9"); e("s_and_b32 s17, s17, 0xffff")
    e("s_mov_b32 s12, s4"); e("s_and_b32 s13, s5, 0xffff")

    def dma_x(tile, j):
        def f():
            if tile >= 16: return
            e("s_add_u32 m0, s44, %d" % (((tile % G1_NX) * G1_XSLOT + j * 1024 - tile * 128) & 0xffffffff))
            e("s_nop 0")
            e("buffer_load_dwordx4 v%d, s[12:15], s29 offen offset:%d lds" % (V_XVO + j, tile * 128))
            g.vm_issue(('x', tile, j))
        return f
    def dma_w2(stage):
        def f():
            if stage >= G1_STEPS: return
            e("s_mov_b64 exec, s[36:37]")
            for j in range(2):
                e("s_add_u32 m0, s45, %d" % ((stage % G1_NW) * G1_WSLOT + j * 896))
                e("s_add_u32 s40, s31, %d" % (stage * 32 * 7168 + j * 8 * 7168))
                e("buffer_load_dwordx4 v%d, s[16:19], s40 offen lds" % V_WVO)
                g.vm_issue(('w', stage, j))
            e("s_mov_b64 exec, -1")
        return f
    dma_w2(0)()
    for j in range(4): dma_x(0, j)()
    dma_w2(1)()
    dma_w2(2)()
    for j in range(4): dma_x(1, j)()
    dma_w2(3)()
    for j in range(2): dma_x(2, j)()
    e("v_and_b32 v%d, 15, v%d" % (V_T1, V_LANE))
    e("v_lshrrev_b32 v%d, 1, v%d" % (V_T2, V_T1))
    e("v_lshrrev_b32 v%d, 4, v%d" % (V_T3, V_LANE))
    e("v_xor_b32 v%d, v%d, v%d" % (V_T2, V_T2, V_T3))
    e("v_lshlrev_b32 v%d, 4, v%d" % (V_T2, V_T2))
    e("v_lshl_add_u32 v%d, v%d, 7, v%d" % (V_XRB, V_T1, V_T2))
    e("s_lshl_b32 s40, s27, 13")
    e("s_add_u32 s40, s40, %d" % G1_XB)
    e("v_add_u32 v%d, s40, v%d" % (V_XRB, V_XRB))
    e("v_xor_b32 v%d, 64, v%d" % (V_XRB + 1, V_XRB))
    e("v_add_u32 v%d, 0x10000, v%d" % (V_XRB + 2, V_XRB))
    e("v_add_u32 v%d, 0x10000, v%d" % (V_XRB + 3, V_XRB + 1))
    e("v_lshrrev_b32 v%d, 2, v%d" % (V_T1, V_LANE))
    e("v_mul_u32_u24 v%d, 224, v%d" % (V_T1, V_T1))
    e("v_and_b32 v%d, 3, v%d" % (V_T2, V_LANE))
    e("v_lshl_add_u32 v%d, v%d, 3, v%d" % (V_WRB, V_T2, V_T1))
    e("s_mul_i32 s40, s28, 7168")
    e("v_add_u32 v%d, s40, v%d" % (V_WRB, V_WRB))
    e("s_mov_b32 s20, s48"); e("s_and_b32 s21, s49, 0xffff"); e("s_mov_b32 s22, %d" % H_BYTES); e("s_mov_b32 s23, 0x00020000")
    if P.get('wrel'):
        e("v_lshlrev_b32 v%d, 4, v%d" % (V_PFX, V_LANE))
        e("s_mul_i32 s62, s2, 28672")
        e("s_lshl_b32 s40, s26, 12")
        e("s_add_u32 s62, s62, s40")
        e("s_mov_b32 s48, s10"); e("s_and_b32 s49, s11, 0xffff"); e("s_mov_b32 s50, %d" % (F * D * 2)); e("s_mov_b32 s51, 0x00020000")
    def wrel_load():
        for j in range(4):
            e("buffer_load_dwordx4 v[%d:%d], v%d, s[48:51], s62 offen offset:%d" % (CPY + 4 * j, CPY + 4 * j + 3, V_PFX, 1024 * j))
            g.vm_issue(('cp', j))
    def wrel_store():
        e("s_add_u32 s52, s20, %d" % WREL_OFF); e("s_addc_u32 s53, s21, 0"); e("s_mov_b32 s54, %d" % (F * D * 2)); e("s_mov_b32 s55, 0x00020000")
        e("v_lshrrev_b32 v%d, 3, v%d" % (V_T1, V_LANE))
        e("s_mov_b32 s40, 458752")
        e("v_mul_lo_u32 v%d, v%d, s40" % (V_T1, V_T1))
        e("v_and_b32 v%d, 7, v%d" % (V_T2, V_LANE))
        e("s_mul_i32 s41, s2, 14")
        for j in range(4):
            e("s_lshl_b32 s42, s26, 1")
            e("s_add_u32 s42, s42, %d" % (j >> 1))
            e("s_add_u32 s43, s41, s42")
            e("s_lshr_b32 s40, s43, 1"); e("s_and_b32 s40, s40, 3"); e("s_lshl_b32 s40, s40, 1")
            e("v_xor_b32 v%d, s40, v%d" % (V_T3, V_T2))
            e("v_lshl_add_u32 v%d, v%d, 4, v%d" % (V_PFW, V_T3, V_T1))
            e("s_lshl_b32 s43, s43, 7")
            if j & 1: e("s_add_u32 s43, s43, %d" % (8 * 458752))
            e("s_cmp_lt_u32 s42, 14")
            e("s_cselect_b32 s43, s43, 0x7fff0000")
            e("buffer_store_dwordx4 v[%d:%d], v%d, s[52:55], s43 offen" % (CPY + 4 * j, CPY + 4 * j + 3, V_PFW))
    def rd_x(step, mi):
        def f():
            if step >= G1_STEPS: return
            sl = (step >> 1) % G1_NX
            base = V_XRB + (step & 1) + (2 if sl == 2 else 0)
            off = (sl & 1) * G1_XSLOT * (0 if sl == 2 else 1) + mi * 2048
            e("ds_read_b128 a[%d:%d], v%d offset:%d" % (xf(step & 1, mi), xf(step & 1, mi) + 3, base, off))
            g.lg_issue(('x', step, mi))
        return f
    def rd_w(step, nj, q):
        def f():
            if step >= G1_STEPS: return
            r = wf(step & 1, nj) + 2 * q
            e("ds_read_b64_tr_b16 a[%d:%d], v%d offset:%d" % (r, r + 1, V_WRB, (step % G1_NW) * G1_WSLOT + q * 3584 + nj * 32))
            g.lg_issue(('w', step, nj, q))
        return f
    for r in range(ACC, ACC + 112): e("v_mov_b32 v%d, 0" % r)
    g.wait('p0', vm=[('w', 0, 0), ('w', 0, 1)] + [('x', 0, j) for j in range(4)])
    e("s_barrier")
    stamp(g, P, 1)
    for mi in range(4): rd_x(0, mi)()
    for nj in range(7):
        for q in range(2): rd_w(0, nj, q)()

    def step(s):
        b = s & 1
        if s + 1 < G1_STEPS:
            need = [('w', s + 1, 0), ('w', s + 1, 1)] + [('x', (s + 1) >> 1, j) for j in range(4)]
            g.wait(('s', s), vm=need, lg='all')
            e("s_barrier")
        else:
            g.wait(('s', s), lg='all')
        mf = []
        for nj in range(7):
            for mi in range(4):
                a = acc(mi, nj)
                mf.append("v_mfma_f32_16x16x32_bf16 v[%d:%d], a[%d:%d], a[%d:%d], v[%d:%d]" %
                          (a, a + 3, wf(b, nj), wf(b, nj) + 3, xf(b, mi), xf(b, mi) + 3, a, a + 3))
        extra = {}
        reads = [rd_x(s + 1, mi) for mi in range(4)] + [rd_w(s + 1, nj, q) for nj in range(7) for q in range(2)]
        for i, r in enumerate(reads):
            extra.setdefault(P['g1_rd0'] + i, []).append(r)
        dp = P['g1_dma']
        extra.setdefault(dp[0], []).append(dma_w2(s + 4))
        if s & 1:
            T = (s - 1) >> 1
            extra.setdefault(dp[1], []).append(dma_x(T + 3, 0))
            extra.setdefault(dp[2], []).append(dma_x(T + 3, 1))
        else:
            T = (s - 2) >> 1
            extra.setdefault(dp[1], []).append(dma_x(T + 3, 2))
            extra.setdefault(dp[2], []).append(dma_x(T + 3, 3))
        if P.get('wrel') and s == P.get('wrel_step', 28):
            extra.setdefault(dp[1], []).append(wrel_load)
        interleave(g, mf, extra)
    for s in range(G1_STEPS): step(s)
    stamp(g, P, 2)
    e("s_waitcnt vmcnt(0) lgkmcnt(0)")
    if P.get('wrel'):
        wrel_store()
    e("s_barrier")
    e("s_mul_i32 s40, s26, 14336")
    e("v_lshlrev_b32 v%d, 4, v%d" % (V_T1, V_LANE))
    e("v_add_u32 v%d, s40, v%d" % (V_T2, V_T1))
    e("s_xor_b32 s41, s26, 4")
    e("s_mul_i32 s41, s41, 14336")
    e("v_add_u32 v%d, s41, v%d" % (V_T3, V_T1))
    e("s_nop 7"); e("s_nop 7")
    e("s_cmp_eq_u32 s28, 0")
    e("s_cbranch_scc0 G1_EP1")
    def ep(mat):
        own = [2 * mat, 2 * mat + 1]; snd = [2 - 2 * mat, 3 - 2 * mat]
        for k, mi in enumerate(snd):
            for nj in range(7):
                a = acc(mi, nj)
                e("ds_write_b128 v%d, v[%d:%d] offset:%d" % (V_T2, a, a + 3, (k * 7 + nj) * 1024))
        e("s_waitcnt lgkmcnt(0)")
        e("s_barrier")
        for k, mi in enumerate(snd):
            for nj in range(7):
                a = acc(mi, nj)
                e("ds_read_b128 v[%d:%d], v%d offset:%d" % (a, a + 3, V_T3, (k * 7 + nj) * 1024))
        C1, C0, ONE = T0, T0 + 2, T0 + 4
        c = -2.0 * 0.7978845608028654 * 1.4426950408889634
        import struct
        def f2u(x): return struct.unpack("<I", struct.pack("<f", x))[0]
        for r in (C1, C1 + 1): e("v_mov_b32 v%d, 0x%08x" % (r, f2u(c * 0.044715)))
        for r in (C0, C0 + 1): e("v_mov_b32 v%d, 0x%08x" % (r, f2u(c)))
        for r in (ONE, ONE + 1): e("v_mov_b32 v%d, 1.0" % r)
        e("s_waitcnt lgkmcnt(0)")
        TT = T0 + 8
        pairs = []
        for k in range(2):
            for nj in range(7):
                for hf in range(2):
                    o = acc(own[k], nj) + 2 * hf; r = acc(snd[k], nj) + 2 * hf
                    gg, uu = (o, r) if mat == 0 else (r, o)
                    pairs.append((gg, uu, k, nj, hf))
        for b0 in range(0, len(pairs), 4):
            grp = pairs[b0:b0 + 4]
            for i, (gg, uu, k, nj, hf) in enumerate(grp):
                t = TT + 2 * i
                e("v_pk_mul_f32 v[%d:%d], v[%d:%d], v[%d:%d]" % (t, t + 1, gg, gg + 1, gg, gg + 1))
            for i, (gg, uu, k, nj, hf) in enumerate(grp):
                t = TT + 2 * i
                e("v_pk_fma_f32 v[%d:%d], v[%d:%d], v[%d:%d], v[%d:%d]" % (t, t + 1, t, t + 1, C1, C1 + 1, C0, C0 + 1))
            for i, (gg, uu, k, nj, hf) in enumerate(grp):
                t = TT + 2 * i
                e("v_pk_mul_f32 v[%d:%d], v[%d:%d], v[%d:%d]" % (t, t + 1, t, t + 1, gg, gg + 1))
            for i in range(len(grp)):
                t = TT + 2 * i
                e("v_exp_f32 v%d, v%d" % (t, t)); e("v_exp_f32 v%d, v%d" % (t + 1, t + 1))
            for i, (gg, uu, k, nj, hf) in enumerate(grp):
                e("v_pk_mul_f32 v[%d:%d], v[%d:%d], v[%d:%d]" % (gg, gg + 1, gg, gg + 1, uu, uu + 1))
            for i in range(len(grp)):
                t = TT + 2 * i
                e("v_pk_add_f32 v[%d:%d], v[%d:%d], v[%d:%d]" % (t, t + 1, t, t + 1, ONE, ONE + 1))
            for i in range(len(grp)):
                t = TT + 2 * i
                e("v_rcp_f32 v%d, v%d" % (t, t)); e("v_rcp_f32 v%d, v%d" % (t + 1, t + 1))
            e("s_nop 0")
            for i, (gg, uu, k, nj, hf) in enumerate(grp):
                t = TT + 2 * i
                e("v_pk_mul_f32 v[%d:%d], v[%d:%d], v[%d:%d]" % (t, t + 1, t, t + 1, gg, gg + 1))
            for i, (gg, uu, k, nj, hf) in enumerate(grp):
                t = TT + 2 * i
                d = acc(own[k], 0) + nj * 2 + hf
                e("v_cvt_pk_bf16_f32 v%d, v%d, v%d" % (d, t, t + 1))
        e("s_lshl_b32 s40, s24, 4")
        e("s_lshl_b32 s41, s27, 2")
        e("s_add_u32 s40, s40, s41")
        e("s_add_u32 s40, s40, %d" % own[0])
        e("s_mul_i32 s40, s40, 114688")
        e("s_mul_i32 s41, s25, 7")
        e("s_lshr_b32 s42, s41, 1")
        e("s_lshl_b32 s42, s42, 10")
        e("s_add_u32 s40, s40, s42")
        e("s_add_u32 s43, s40, 114688")
        e("s_and_b32 s41, s25, 1")
        e("s_cmp_eq_u32 s41, 0")
        e("s_cbranch_scc0 G1_ODD%d" % mat)
        for k, so in ((0, "s40"), (1, "s43")):
            d = acc(own[k], 0)
            for pi in range(3):
                e("buffer_store_dwordx4 v[%d:%d], v%d, s[20:23], %s offen offset:%d" % (d + 4 * pi, d + 4 * pi + 3, V_T1, so, pi * 1024))
            e("buffer_store_dwordx2 v[%d:%d], v%d, s[20:23], %s offen offset:%d" % (d + 12, d + 13, V_T1, so, 3 * 1024))
        e("s_branch G1_END")
        g.label("G1_ODD%d" % mat)
        for k, so in ((0, "s40"), (1, "s43")):
            d = acc(own[k], 0)
            e("buffer_store_dwordx2 v[%d:%d], v%d, s[20:23], %s offen offset:8" % (d, d + 1, V_T1, so))
            for pi in range(3):
                e("buffer_store_dwordx4 v[%d:%d], v%d, s[20:23], %s offen offset:%d" % (d + 2 + 4 * pi, d + 2 + 4 * pi + 3, V_T1, so, (pi + 1) * 1024))
        e("s_branch G1_END")
    ep(0)
    g.label("G1_EP1")
    ep(1)
    g.label("G1_END")
    stamp(g, P, 3)
    stamp_dump(g, P, ("s20", "s21"), 6)
    g.label("G1_EXIT")
    e("s_endpgm")

G2_SLOT = 32768
G2_STAGES = 14
G2_US = 56

def gemm2(g, P):
    e = g.e
    G2_RING = P.get('g2_ring', 8)
    G2_NSLOT = P.get('g2_nslot', 4)
    WF0 = G2_RING * 8
    ACC = 16
    def acc(mi, nj): return ACC + (mi * 4 + nj) * 4
    def hf(u, mi): return (u % G2_RING) * 8 + mi * 4
    def wf(b, nj): return WF0 + b * 16 + nj * 4
    V_LANE, V_WVO, V_HVO, V_T1, V_T2, V_T3 = 1, 2, 3, 5, 6, 7
    V_RB = 48
    NSP = (G2_NSLOT + 1) // 2
    g.label("gemm2_kernel")
    e("s_cmp_ge_u32 s2, 256")
    e("s_cbranch_scc1 G2_EXIT")
    stamp(g, P, 0)
    e("s_load_dwordx2 s[6:7], s[0:1], 32")
    e("s_load_dwordx2 s[10:11], s[0:1], 48")
    e("v_lshrrev_b32 v%d, 6, v0" % V_T1)
    e("v_and_b32 v%d, 63, v0" % V_LANE)
    e("s_and_b32 s40, s2, 7")
    e("v_readfirstlane_b32 s26, v%d" % V_T1)
    e("s_lshr_b32 s41, s2, 3")
    e("s_and_b32 s42, s40, 3")
    e("s_lshl_b32 s42, s42, 2")
    e("s_and_b32 s43, s41, 3")
    e("s_add_u32 s24, s42, s43")
    e("s_lshr_b32 s42, s40, 2")
    e("s_lshl_b32 s42, s42, 3")
    e("s_lshr_b32 s43, s41, 2")
    e("s_add_u32 s25, s42, s43")
    e("s_and_b32 s27, s26, 3")
    e("s_lshr_b32 s28, s26, 2")
    e("v_lshlrev_b32 v%d, 4, v%d" % (V_WVO, V_LANE))
    e("v_lshlrev_b32 v%d, 4, v%d" % (V_HVO, V_LANE))
    e("v_add_u32 v%d, 114688, v%d" % (V_HVO + 1, V_HVO))
    e("s_lshl_b32 s44, s26, 12")
    e("s_mul_i32 s41, s25, 458752")
    e("s_add_u32 s29, s44, s41")
    e("s_lshl_b32 s40, s24, 3")
    e("s_lshl_b32 s41, s27, 1")
    e("s_add_u32 s40, s40, s41")
    e("s_mul_i32 s40, s40, 114688")
    e("s_lshl_b32 s41, s28, 10")
    e("s_add_u32 s30, s40, s41")
    e("s_mov_b32 s14, %d" % (0 if (P.get('noload') or P.get('noload_a')) else F * D * 2)); e("s_mov_b32 s15, 0x00020000")
    e("s_mov_b32 s18, %d" % (0 if (P.get('noload') or P.get('noload_b')) else H_BYTES)); e("s_mov_b32 s19, 0x00020000")
    e("s_waitcnt lgkmcnt(0)")
    e("s_mov_b32 s16, s10"); e("s_and_b32 s17, s11, 0xffff")
    e("s_add_u32 s12, s16, %d" % WREL_OFF); e("s_addc_u32 s13, s17, 0")

    def dma4(stage):
        def f():
            if stage >= G2_STAGES: return
            e("s_add_u32 m0, s44, %d" % ((stage % G2_NSLOT) * G2_SLOT))
            e("s_add_u32 s40, s29, %d" % (stage * 32768))
            for j in range(4):
                e("buffer_load_dwordx4 v%d, s[12:15], s40 offen offset:%d lds" % (V_WVO, j * 1024))
                g.vm_issue(('d', stage, j))
        return f
    def dma1(stage, j):
        def f():
            if stage >= G2_STAGES: return
            if j == 0:
                e("s_add_u32 s45, s44, %d" % ((stage % G2_NSLOT) * G2_SLOT))
                e("s_add_u32 s41, s29, %d" % (stage * 32768))
            e("s_mov_b32 m0, s45")
            e("s_nop 0")
            e("buffer_load_dwordx4 v%d, s[12:15], s41 offen offset:%d lds" % (V_WVO, j * 1024))
            g.vm_issue(('d', stage, j))
        return f
    def ldh(u, mi):
        def f():
            if u >= G2_US: return
            r = hf(u, mi)
            if mi == 0 and (u & 1) == 0:
                e("s_add_u32 s31, s30, %d" % (u * 2048))
            e("buffer_load_dwordx4 a[%d:%d], v%d, s[16:19], s31 offen offset:%d" % (r, r + 3, V_HVO + mi, (u & 1) * 2048))
            g.vm_issue(('h', u, mi))
        return f
    def rd_w(u, nj, q):
        def f():
            if u >= G2_US: return
            r = wf(u & 1, nj) + 2 * q
            sl = (u >> 2) % G2_NSLOT
            e("ds_read_b64_tr_b16 a[%d:%d], v%d offset:%d" % (r, r + 1, V_RB + (sl >> 1) * 4 + nj, (sl & 1) * G2_SLOT + ((u & 3) * 64 + 16 * q) * 128))
            g.lg_issue(('w', u, nj, q))
        return f
    hq = list(range(G2_RING - 1))
    for st in range(G2_NSLOT):
        dma4(st)()
        take = hq[:4] if st < G2_NSLOT - 1 else hq
        hq = hq[len(take):]
        for u in take:
            for mi in range(2): ldh(u, mi)()
    e("v_lshrrev_b32 v%d, 3, v%d" % (V_T1, V_LANE))
    e("v_and_b32 v%d, 3, v%d" % (V_T1, V_T1))
    e("v_lshlrev_b32 v%d, 1, v%d" % (V_T1, V_T1))
    e("v_lshrrev_b32 v%d, 2, v%d" % (V_T2, V_LANE))
    e("v_lshlrev_b32 v%d, 7, v%d" % (V_T2, V_T2))
    e("v_and_b32 v%d, 3, v%d" % (V_T3, V_LANE))
    e("v_lshl_add_u32 v%d, v%d, 3, v%d" % (V_T2, V_T3, V_T2))
    e("s_lshl_b32 s40, s28, 12")
    e("v_add_u32 v%d, s40, v%d" % (V_T2, V_T2))
    for nj in range(4):
        e("v_xor_b32 v%d, %d, v%d" % (V_T3, 2 * nj, V_T1))
        e("v_lshl_add_u32 v%d, v%d, 4, v%d" % (V_RB + nj, V_T3, V_T2))
        for sp in range(1, NSP):
            e("v_add_u32 v%d, %d, v%d" % (V_RB + sp * 4 + nj, sp * 65536, V_RB + nj))
    e("s_mov_b32 s20, s6"); e("s_and_b32 s21, s7, 0xffff"); e("s_mov_b32 s22, %d" % (S * D * 2)); e("s_mov_b32 s23, 0x00020000")
    for r in range(ACC, ACC + 32): e("v_mov_b32 v%d, 0" % r)
    g.wait('p0', vm=[('d', 0, j) for j in range(4)])
    e("s_barrier")
    stamp(g, P, 1)
    for nj in range(4):
        for q in range(2): rd_w(0, nj, q)()

    def wstep(u):
        b = u & 1
        last = (u & 3) == 3
        t = u >> 2
        if last and t + 1 < G2_STAGES:
            g.wait(('b', u), vm=[('d', t + 1, j) for j in range(4)] + [('h', u, 0), ('h', u, 1)], lg='all')
            e("s_barrier")
        else:
            g.wait(('w', u), vm=[('h', u, 0), ('h', u, 1)], lg=[('w', u, nj, q) for nj in range(4) for q in range(2)])
        mf = []
        for nj in range(4):
            for mi in range(2):
                a = acc(mi, nj)
                mf.append("v_mfma_f32_16x16x32_bf16 v[%d:%d], a[%d:%d], a[%d:%d], v[%d:%d]" %
                          (a, a + 3, wf(b, nj), wf(b, nj) + 3, hf(u, mi), hf(u, mi) + 3, a, a + 3))
        extra = {}
        reads = [rd_w(u + 1, nj, q) for nj in range(4) for q in range(2)]
        for i, r in enumerate(reads): extra.setdefault(i // P.get('g2_rdper', 1), []).append(r)
        extra.setdefault(P.get('g2_h0', 1), []).append(ldh(u + G2_RING - 1, 0))
        extra.setdefault(P.get('g2_h1', 5), []).append(ldh(u + G2_RING - 1, 1))
        if P.get('g2_spread'):
            tt = (u + 1) >> 2
            j = (u + 1) & 3
            if u >= 3: extra.setdefault(P.get('g2_dpos', 7), []).append(dma1(tt + G2_NSLOT - 2 + 1 - 1 + 1 - 1, j) if False else dma1(tt - 1 + G2_NSLOT, j))
        elif last:
            extra.setdefault(P.get('g2_dpos', 7), []).append(dma4(t + G2_NSLOT))
        interleave(g, mf, extra)
    for u in range(G2_US): wstep(u)
    stamp(g, P, 2)
    e("s_waitcnt vmcnt(0) lgkmcnt(0)")
    e("s_barrier")
    e("s_lshl_b32 s40, s26, 12")
    e("v_lshlrev_b32 v%d, 4, v%d" % (V_T1, V_LANE))
    e("v_add_u32 v%d, s40, v%d" % (V_T2, V_T1))
    e("s_xor_b32 s41, s26, 4")
    e("s_lshl_b32 s41, s41, 12")
    e("v_add_u32 v%d, s41, v%d" % (V_T3, V_T1))
    e("s_nop 7"); e("s_nop 7")
    e("s_cmp_eq_u32 s28, 0")
    e("s_cbranch_scc0 G2_EP1")
    def ep(kh):
        own, snd = kh, 1 - kh
        for nj in range(4):
            a = acc(snd, nj)
            e("ds_write_b128 v%d, v[%d:%d] offset:%d" % (V_T2, a, a + 3, nj * 1024))
        e("s_waitcnt lgkmcnt(0)")
        e("s_barrier")
        for nj in range(4):
            a = acc(snd, nj)
            e("ds_read_b128 v[%d:%d], v%d offset:%d" % (a, a + 3, V_T3, nj * 1024))
        e("v_and_b32 v%d, 15, v%d" % (V_T1, V_LANE))
        e("v_lshrrev_b32 v%d, 4, v%d" % (V_T2, V_LANE))
        e("v_lshlrev_b32 v%d, 3, v%d" % (V_T2, V_T2))
        e("v_lshl_add_u32 v%d, v%d, 11, v%d" % (V_T1, V_T1, V_T2))
        e("s_lshl_b32 s40, s24, 7")
        e("s_lshl_b32 s41, s27, 5")
        e("s_add_u32 s40, s40, s41")
        e("s_add_u32 s40, s40, %d" % (16 * own))
        e("s_lshl_b32 s40, s40, 11")
        e("s_lshl_b32 s41, s25, 7")
        e("s_add_u32 s40, s40, s41")
        e("s_waitcnt lgkmcnt(0)")
        for nj in range(4):
            a = acc(own, nj); r = acc(snd, nj)
            e("v_pk_add_f32 v[%d:%d], v[%d:%d], v[%d:%d]" % (a, a + 1, a, a + 1, r, r + 1))
            e("v_pk_add_f32 v[%d:%d], v[%d:%d], v[%d:%d]" % (a + 2, a + 3, a + 2, a + 3, r + 2, r + 3))
        for nj in range(4):
            a = acc(own, nj)
            e("v_cvt_pk_bf16_f32 v%d, v%d, v%d" % (a, a, a + 1))
            e("v_cvt_pk_bf16_f32 v%d, v%d, v%d" % (a + 1, a + 2, a + 3))
        for nj in range(4):
            a = acc(own, nj)
            e("buffer_store_dwordx2 v[%d:%d], v%d, s[20:23], s40 offen offset:%d" % (a, a + 1, V_T1, nj * 32))
        e("s_branch G2_END")
    ep(0)
    g.label("G2_EP1")
    ep(1)
    g.label("G2_END")
    stamp(g, P, 3)
    if P.get('stamps'): e("s_add_u32 s16, s16, 0x1000000"); e("s_addc_u32 s17, s17, 0")
    stamp_dump(g, P, ("s16", "s17"), 6)
    g.label("G2_EXIT")
    e("s_endpgm")

HEADER = """; Kernarg layout for this problem (56 bytes, ptrs only, base s[0:1]):
; @launch kernel=gemm1_kernel grid=(256,1,1) block=(512,1,1) lds=%d
; @launch kernel=gemm2_kernel grid=(256,1,1) block=(512,1,1) lds=%d
.amdgcn_target "amdgcn-amd-amdhsa--gfx950"
.text
"""
def kd(name, nv, acc_off, ns=64):
    return """.amdhsa_kernel %s
  .amdhsa_next_free_vgpr %d
  .amdhsa_next_free_sgpr %d
  .amdhsa_accum_offset %d
  .amdhsa_group_segment_fixed_size 0
  .amdhsa_kernarg_size 56
  .amdhsa_user_sgpr_count 2
  .amdhsa_user_sgpr_kernarg_segment_ptr 1
  .amdhsa_system_sgpr_workgroup_id_x 1
.end_amdhsa_kernel
""" % (name, nv, ns, acc_off)

def build(P):
    out = [HEADER % (G1_LDS, G2_SLOT * P.get('g2_nslot', 4))]
    for name, fn in (("gemm1_kernel", gemm1), ("gemm2_kernel", gemm2)):
        g = Sim()
        g.nomfma = P.get('nomfma', False)
        g.drop = P.get('drop', ())
        fn(g, P)
        g.emit = True
        fn(g, P)
        out.append(".globl %s\n.p2align 8\n.type %s,@function\n" % (name, name) + "\n".join(g.lines) + "\n")
    out.append('.section .rodata,"a"\n.p2align 6\n' + kd("gemm1_kernel", 256, 168, 80) + ".p2align 6\n" + kd("gemm2_kernel", 64 + P.get("g2_ring", 8) * 8 + 32, 64, 80))
    return "".join(out)

DEFAULT = dict(g1_rd0=0, g1_dma=[3, 12, 20], g2_rdper=2, g2_h0=4, g2_h1=6, g2_dma=[4,5,6,7], wrel=1)
if __name__ == "__main__":
    P = dict(DEFAULT)
    for a in sys.argv[2:]:
        k, v = a.split("=")
        P[k] = eval(v)
    txt = build(P)
    path = sys.argv[1] if len(sys.argv) > 1 else "standalone__geglu_ffn__prompt.s"
    open(path, "w").write(txt)
    print("wrote", path, len(txt))
```

```python
import sys

S, D, F = 2048, 1024, 3584
WREL_OFF = 0x1000000
H_BYTES = S * F * 2

class Sim:
    def __init__(self):
        self.emit = False
        self.lines = []
        self.vm = []; self.lg = []
        self.vmN = {}; self.lgN = {}
    def e(self, s):
        if self.emit:
            for sub in getattr(self, 'drop', ()):
                if sub in s: return
            self.lines.append("  " + s)
    def label(self, s):
        if self.emit: self.lines.append(s + ":")
    def vm_issue(self, tag):
        if not self.emit: self.vm.append(tag)
    def lg_issue(self, tag):
        if not self.emit: self.lg.append(tag)
    def _n(self, q, tags):
        idx = -1
        for t in tags:
            for i in range(len(q) - 1, -1, -1):
                if q[i] == t:
                    idx = max(idx, i); break
            else:
                raise KeyError(("tag never issued", t))
        return len(q) - 1 - idx
    def wait(self, site, vm=None, lg=None):
        if not self.emit:
            if vm is not None:
                n = 0 if vm == 'all' else self._n(self.vm, vm)
                self.vmN[site] = min(self.vmN.get(site, 1 << 30), n)
            if lg is not None:
                n = 0 if lg == 'all' else self._n(self.lg, lg)
                self.lgN[site] = min(self.lgN.get(site, 1 << 30), n)
            return
        parts = []
        if vm is not None and self.vmN[site] <= 63: parts.append("vmcnt(%d)" % self.vmN[site])
        if lg is not None: parts.append("lgkmcnt(%d)" % min(self.lgN[site], 15))
        if parts: self.e("s_waitcnt " + " ".join(parts))

def stamp(g, P, idx):
    if P.get('stamps'):
        g.e("s_memtime s[%d:%d]" % (66 + 2 * idx, 67 + 2 * idx))
        if idx == 0: g.e("s_memrealtime s[74:75]")
        if idx == 3: g.e("s_memrealtime s[76:77]")
def stamp_dump(g, P, wsreg, n):
    if not P.get('stamps'): return
    e = g.e
    e("s_waitcnt lgkmcnt(0) vmcnt(0)")
    e("s_add_u32 s60, %s, 0x8000000" % wsreg[0]); e("s_addc_u32 s61, %s, 0" % wsreg[1])
    e("s_mov_b32 s62, 0x1000000"); e("s_mov_b32 s63, 0x00020000")
    e("s_lshl_b32 s64, s2, 3"); e("s_add_u32 s64, s64, s26"); e("s_lshl_b32 s64, s64, 7")
    e("v_mov_b32 v11, 0")
    for i in range(n):
        e("v_mov_b32 v12, s%d" % (66 + 2 * i)); e("v_mov_b32 v13, s%d" % (67 + 2 * i))
        e("buffer_store_dwordx2 v[12:13], v11, s[60:63], s64 offen offset:%d" % (8 * i))
    e("s_waitcnt vmcnt(0)")

def interleave(g, main, extra):
    for f in extra.get(-1, []):
        f()
    for i, m in enumerate(main):
        if not getattr(g, 'nomfma', False): g.e(m)
        for f in extra.get(i, []):
            f()

G1_XSLOT = 32768; G1_NX = 3
G1_WSLOT = 14336; G1_NW = 4
G1_XB = G1_WSLOT * G1_NW
G1_LDS = G1_XB + G1_XSLOT * G1_NX
G1_STEPS = 32

def gemm1(g, P):
    ACC = 16
    def acc(mi, nj): return ACC + (mi * 7 + nj) * 4
    T0 = 128
    CPY = 152
    def xf(b, mi): return b * 44 + mi * 4
    def wf(b, nj): return b * 44 + 16 + nj * 4
    V_LANE, V_XVO, V_WVO, V_XRB, V_WRB, V_T1, V_T2, V_T3, V_PFX, V_PFW = 1, 2, 6, 7, 11, 12, 13, 14, 15, 0
    e = g.e
    g.label("gemm1_kernel")
    e("s_cmp_ge_u32 s2, 256")
    e("s_cbranch_scc1 G1_EXIT")
    stamp(g, P, 0)
    e("s_load_dwordx4 s[4:7], s[0:1], 0")
    e("s_load_dwordx4 s[8:11], s[0:1], 16")
    e("s_load_dwordx2 s[48:49], s[0:1], 48")
    e("v_lshrrev_b32 v%d, 6, v0" % V_T1)
    e("v_and_b32 v%d, 63, v0" % V_LANE)
    e("s_and_b32 s40, s2, 7")
    e("v_readfirstlane_b32 s26, v%d" % V_T1)
    e("s_lshr_b32 s41, s2, 3")
    e("s_and_b32 s42, s40, 1")
    e("s_lshl_b32 s42, s42, 2")
    e("s_and_b32 s43, s41, 3")
    e("s_add_u32 s24, s42, s43")
    e("s_lshr_b32 s42, s40, 1")
    e("s_lshl_b32 s42, s42, 3")
    e("s_lshr_b32 s43, s41, 2")
    e("s_add_u32 s25, s42, s43")
    e("s_and_b32 s27, s26, 3")
    e("s_lshr_b32 s28, s26, 2")
    e("v_mul_u32_u24 v%d, 37, v%d" % (V_T1, V_LANE))
    e("v_lshrrev_b32 v%d, 9, v%d" % (V_T1, V_T1))
    e("v_mul_u32_u24 v%d, 14, v%d" % (V_T2, V_T1))
    e("v_sub_u32 v%d, v%d, v%d" % (V_T2, V_LANE, V_T2))
    e("v_mul_u32_u24 v%d, 7168, v%d" % (V_T1, V_T1))
    e("v_lshl_add_u32 v%d, v%d, 4, v%d" % (V_WVO, V_T2, V_T1))
    e("v_lshrrev_b32 v%d, 3, v%d" % (V_T1, V_LANE))
    e("v_lshrrev_b32 v%d, 4, v%d" % (V_T2, V_LANE))
    e("v_and_b32 v%d, 7, v%d" % (V_T3, V_LANE))
    e("v_xor_b32 v%d, v%d, v%d" % (V_T2, V_T2, V_T3))
    e("v_lshlrev_b32 v%d, 4, v%d" % (V_T2, V_T2))
    e("v_lshl_add_u32 v%d, v%d, 11, v%d" % (V_XVO, V_T1, V_T2))
    e("v_xor_b32 v%d, 64, v%d" % (V_T1, V_XVO))
    e("v_add_u32 v%d, 16384, v%d" % (V_XVO + 1, V_T1))
    e("v_add_u32 v%d, 32768, v%d" % (V_XVO + 2, V_XVO))
    e("v_add_u32 v%d, 49152, v%d" % (V_XVO + 3, V_T1))
    e("s_lshl_b32 s40, s24, 19")
    e("s_lshl_b32 s41, s26, 16")
    e("s_add_u32 s29, s40, s41")
    e("s_and_b32 s40, s27, 1")
    e("s_lshl_b32 s40, s40, 4")
    e("s_lshr_b32 s41, s27, 1")
    e("s_lshl_b32 s41, s41, 2")
    e("s_add_u32 s40, s40, s41")
    e("s_mul_i32 s40, s40, 7168")
    e("s_mul_i32 s41, s25, 224")
    e("s_add_u32 s31, s40, s41")
    e("s_lshl_b32 s44, s26, 12")
    e("s_add_u32 s44, s44, %d" % G1_XB)
    e("s_mul_i32 s45, s28, 7168")
    e("s_mul_i32 s40, s27, 1792")
    e("s_add_u32 s45, s45, s40")
    e("s_mov_b32 s36, -1"); e("s_mov_b32 s37, 0x00ffffff")
    e("s_mov_b32 s14, %d" % (0 if (P.get('noload') or P.get('noload_a')) else S * D * 2)); e("s_mov_b32 s15, 0x00020000")
    e("s_mov_b32 s18, %d" % (0 if (P.get('noload') or P.get('noload_b')) else D * F * 2)); e("s_mov_b32 s19, 0x00020000")
    e("s_cmp_eq_u32 s28, 0")
    e("s_waitcnt lgkmcnt(0)")
    e("s_cselect_b32 s16, s6, s8"); e("s_cselect_b32 s17, s7, s9"); e("s_and_b32 s17, s17, 0xffff")
    e("s_mov_b32 s12, s4"); e("s_and_b32 s13, s5, 0xffff")

    ROT = P.get('g1_rot', 0)
    if ROT:
        e("s_and_b32 s40, s2, 7")
        e("s_mul_i32 s40, s40, %d" % ROT)
        e("s_and_b32 s40, s40, 15")
        e("s_sub_u32 s33, 16, s40")
        e("s_lshl_b32 s41, s40, 7")
        e("s_add_u32 s29, s29, s41")
        e("s_sub_u32 s30, s29, 2048")
        e("s_mul_i32 s41, s40, %d" % (64 * 7168))
        e("s_add_u32 s31, s31, s41")
        e("s_sub_u32 s32, s31, %d" % (1024 * 7168))
    def dma_x(tile, j):
        def f():
            if tile >= 16: return
            e("s_add_u32 m0, s44, %d" % (((tile % G1_NX) * G1_XSLOT + j * 1024 - tile * 128) & 0xffffffff))
            if ROT:
                e("s_cmp_gt_u32 s33, %d" % tile)
                e("s_cselect_b32 s34, s29, s30")
            else:
                e("s_nop 0")
            e("buffer_load_dwordx4 v%d, s[12:15], %s offen offset:%d lds" % (V_XVO + j, "s34" if ROT else "s29", tile * 128))
            g.vm_issue(('x', tile, j))
        return f
    def dma_w2(stage):
        def f():
            if stage >= G1_STEPS: return
            e("s_mov_b64 exec, s[36:37]")
            if ROT:
                e("s_cmp_gt_u32 s33, %d" % (stage >> 1))
                e("s_cselect_b32 s35, s31, s32")
            for j in range(2):
                e("s_add_u32 m0, s45, %d" % ((stage % G1_NW) * G1_WSLOT + j * 896))
                e("s_add_u32 s40, %s, %d" % ("s35" if ROT else "s31", stage * 32 * 7168 + j * 8 * 7168))
                e("buffer_load_dwordx4 v%d, s[16:19], s40 offen lds" % V_WVO)
                g.vm_issue(('w', stage, j))
            e("s_mov_b64 exec, -1")
        return f
    dma_w2(0)()
    for j in range(4): dma_x(0, j)()
    dma_w2(1)()
    late = [dma_w2(2)] + [dma_x(1, j) for j in range(4)] + [dma_w2(3)] + [dma_x(2, j) for j in range(2)]
    NL = P.get('g1_late', 0)
    for f in late[:len(late) - NL]: f()
    late = late[len(late) - NL:]
    e("v_and_b32 v%d, 15, v%d" % (V_T1, V_LANE))
    e("v_lshrrev_b32 v%d, 1, v%d" % (V_T2, V_T1))
    e("v_lshrrev_b32 v%d, 4, v%d" % (V_T3, V_LANE))
    e("v_xor_b32 v%d, v%d, v%d" % (V_T2, V_T2, V_T3))
    e("v_lshlrev_b32 v%d, 4, v%d" % (V_T2, V_T2))
    e("v_lshl_add_u32 v%d, v%d, 7, v%d" % (V_XRB, V_T1, V_T2))
    e("s_lshl_b32 s40, s27, 13")
    e("s_add_u32 s40, s40, %d" % G1_XB)
    e("v_add_u32 v%d, s40, v%d" % (V_XRB, V_XRB))
    e("v_xor_b32 v%d, 64, v%d" % (V_XRB + 1, V_XRB))
    e("v_add_u32 v%d, 0x10000, v%d" % (V_XRB + 2, V_XRB))
    e("v_add_u32 v%d, 0x10000, v%d" % (V_XRB + 3, V_XRB + 1))
    e("v_lshrrev_b32 v%d, 2, v%d" % (V_T1, V_LANE))
    e("v_mul_u32_u24 v%d, 224, v%d" % (V_T1, V_T1))
    e("v_and_b32 v%d, 3, v%d" % (V_T2, V_LANE))
    e("v_lshl_add_u32 v%d, v%d, 3, v%d" % (V_WRB, V_T2, V_T1))
    e("s_mul_i32 s40, s28, 7168")
    e("v_add_u32 v%d, s40, v%d" % (V_WRB, V_WRB))
    e("s_mov_b32 s20, s48"); e("s_and_b32 s21, s49, 0xffff"); e("s_mov_b32 s22, %d" % H_BYTES); e("s_mov_b32 s23, 0x00020000")
    if P.get('wrel'):
        e("v_lshlrev_b32 v%d, 4, v%d" % (V_PFX, V_LANE))
        e("s_mul_i32 s62, s2, 28672")
        e("s_lshl_b32 s40, s26, 12")
        e("s_add_u32 s62, s62, s40")
        e("s_mov_b32 s48, s10"); e("s_and_b32 s49, s11, 0xffff"); e("s_mov_b32 s50, %d" % (F * D * 2)); e("s_mov_b32 s51, 0x00020000")
    def wrel_load():
        for j in range(4):
            e("buffer_load_dwordx4 v[%d:%d], v%d, s[48:51], s62 offen offset:%d" % (CPY + 4 * j, CPY + 4 * j + 3, V_PFX, 1024 * j))
            g.vm_issue(('cp', j))
    def wrel_store():
        e("s_add_u32 s84, s20, %d" % WREL_OFF); e("s_addc_u32 s85, s21, 0"); e("s_mov_b32 s86, %d" % (F * D * 2)); e("s_mov_b32 s87, 0x00020000")
        e("v_lshrrev_b32 v%d, 3, v%d" % (V_T1, V_LANE))
        e("s_mov_b32 s40, 458752")
        e("v_mul_lo_u32 v%d, v%d, s40" % (V_T1, V_T1))
        e("v_and_b32 v%d, 7, v%d" % (V_T2, V_LANE))
        e("s_mul_i32 s41, s2, 14")
        for j in range(4):
            e("s_lshl_b32 s42, s26, 1")
            e("s_add_u32 s42, s42, %d" % (j >> 1))
            e("s_add_u32 s43, s41, s42")
            e("s_lshr_b32 s40, s43, 1"); e("s_and_b32 s40, s40, 3"); e("s_lshl_b32 s40, s40, 1")
            e("v_xor_b32 v%d, s40, v%d" % (V_T3, V_T2))
            e("v_lshl_add_u32 v%d, v%d, 4, v%d" % (V_PFW, V_T3, V_T1))
            e("s_lshl_b32 s43, s43, 7")
            if j & 1: e("s_add_u32 s43, s43, %d" % (8 * 458752))
            e("s_cmp_lt_u32 s42, 14")
            e("s_cselect_b32 s43, s43, 0x7fff0000")
            e("buffer_store_dwordx4 v[%d:%d], v%d, s[84:87], s43 offen" % (CPY + 4 * j, CPY + 4 * j + 3, V_PFW))
            g.vm_issue(('cs', j))
    PF = P.get('g1_pf', 0); PFD = P.get('g1_pfd', 3)
    V_PX, V_PW, V_DUM = 144, 145, 146
    if PF:
        e("s_mov_b32 s52, s6"); e("s_and_b32 s53, s7, 0xffff"); e("s_mov_b32 s54, %d" % (D * F * 2)); e("s_mov_b32 s55, 0x00020000")
        e("s_mov_b32 s56, s8"); e("s_and_b32 s57, s9, 0xffff"); e("s_mov_b32 s58, %d" % (D * F * 2)); e("s_mov_b32 s59, 0x00020000")
        e("v_and_b32 v%d, 31, v%d" % (V_T1, V_LANE))
        e("v_lshrrev_b32 v%d, 5, v%d" % (V_T2, V_LANE))
        e("v_lshlrev_b32 v%d, 7, v%d" % (V_T2, V_T2))
        e("v_lshl_add_u32 v%d, v%d, 11, v%d" % (V_PX, V_T1, V_T2))
        e("v_mul_u32_u24 v%d, 37, v%d" % (V_T1, V_LANE))
        e("v_lshrrev_b32 v%d, 9, v%d" % (V_T1, V_T1))
        e("v_mul_u32_u24 v%d, 14, v%d" % (V_T2, V_T1))
        e("v_sub_u32 v%d, v%d, v%d" % (V_T2, V_LANE, V_T2))
        e("v_mul_u32_u24 v%d, 7168, v%d" % (V_T1, V_T1))
        e("v_lshl_add_u32 v%d, v%d, 7, v%d" % (V_PW, V_T2, V_T1))
        e("s_and_b32 s40, s2, 1")
        e("s_lshl_b32 s40, s40, 10")
        e("s_lshr_b32 s41, s2, 3")
        e("s_lshl_b32 s42, s41, 5")
        e("s_add_u32 s40, s40, s42")
        e("s_lshl_b32 s60, s40, 11")
        e("s_and_b32 s40, s2, 7")
        e("s_lshr_b32 s40, s40, 1")
        e("s_mul_i32 s40, s40, 1792")
        e("s_mul_i32 s42, s41, %d" % (4 * 7168))
        e("s_add_u32 s61, s40, s42")
    def prefetch(G):
        def f():
            if G >= 8: return
            e("s_cmp_eq_u32 s26, %d" % (G & 7))
            e("s_cbranch_scc0 G1_PF%d" % G)
            e("s_add_u32 s41, s61, %d" % (G * 128 * 7168))
            e("buffer_load_dword v%d, v%d, s[12:15], s60 offen offset:%d" % (V_DUM, V_PX, G * 256))
            e("buffer_load_dword v%d, v%d, s[52:55], s41 offen" % (V_DUM, V_PW))
            e("buffer_load_dword v%d, v%d, s[56:59], s41 offen" % (V_DUM, V_PW))
            g.label("G1_PF%d" % G)
        return f
    def rd_x(step, mi):
        def f():
            if step >= G1_STEPS: return
            sl = (step >> 1) % G1_NX
            base = V_XRB + (step & 1) + (2 if sl == 2 else 0)
            off = (sl & 1) * G1_XSLOT * (0 if sl == 2 else 1) + mi * 2048
            e("ds_read_b128 a[%d:%d], v%d offset:%d" % (xf(step & 1, mi), xf(step & 1, mi) + 3, base, off))
            g.lg_issue(('x', step, mi))
        return f
    def rd_w(step, nj, q):
        def f():
            if step >= G1_STEPS: return
            r = wf(step & 1, nj) + 2 * q
            e("ds_read_b64_tr_b16 a[%d:%d], v%d offset:%d" % (r, r + 1, V_WRB, (step % G1_NW) * G1_WSLOT + q * 3584 + nj * 32))
            g.lg_issue(('w', step, nj, q))
        return f
    for r in range(ACC, ACC + 112): e("v_mov_b32 v%d, 0" % r)
    g.wait('p0', vm=[('w', 0, 0), ('w', 0, 1)] + [('x', 0, j) for j in range(4)])
    e("s_barrier")
    stamp(g, P, 1)
    for mi in range(4): rd_x(0, mi)()
    for nj in range(7):
        for q in range(2): rd_w(0, nj, q)()
    for f in late: f()

    def step(s):
        b = s & 1
        if s + 1 < G1_STEPS:
            need = [('w', s + 1, 0), ('w', s + 1, 1)] + [('x', (s + 1) >> 1, j) for j in range(4)]
            g.wait(('s', s), vm=need, lg='all')
            e("s_barrier")
        else:
            g.wait(('s', s), lg='all')
        mf = []
        for nj in range(7):
            for mi in range(4):
                a = acc(mi, nj)
                mf.append("v_mfma_f32_16x16x32_bf16 v[%d:%d], a[%d:%d], a[%d:%d], v[%d:%d]" %
                          (a, a + 3, wf(b, nj), wf(b, nj) + 3, xf(b, mi), xf(b, mi) + 3, a, a + 3))
        extra = {}
        reads = [rd_x(s + 1, mi) for mi in range(4)] + [rd_w(s + 1, nj, q) for nj in range(7) for q in range(2)]
        for i, r in enumerate(reads):
            extra.setdefault(P['g1_rd0'] + i, []).append(r)
        dp = P['g1_dma']
        extra.setdefault(dp[0], []).append(dma_w2(s + 4))
        if s & 1:
            T = (s - 1) >> 1
            extra.setdefault(dp[1], []).append(dma_x(T + 3, 0))
            extra.setdefault(dp[2], []).append(dma_x(T + 3, 1))
        else:
            T = (s - 2) >> 1
            extra.setdefault(dp[1], []).append(dma_x(T + 3, 2))
            extra.setdefault(dp[2], []).append(dma_x(T + 3, 3))
        if PF:
            if s == 0:
                for G in range(1, PFD + 1): extra.setdefault(24, []).append(prefetch(G))
            elif s % 4 == 0:
                extra.setdefault(24, []).append(prefetch(s // 4 + PFD))
        if P.get('wrel') and s == P.get('wrel_step', 26):
            extra.setdefault(dp[1], []).append(wrel_load)
        if P.get('wrel') and s == P.get('wrel_step', 26) + P.get('wrel_gap', 4):
            def ws_():
                g.wait(('cpw',), vm=[('cp', j) for j in range(4)])
                wrel_store()
            extra.setdefault(dp[1], []).append(ws_)
        interleave(g, mf, extra)
    LASTOV = P.get('g1_lastov', 1)
    for s in range(G1_STEPS - (1 if LASTOV else 0)): step(s)
    stamp(g, P, 2)
    e("s_waitcnt vmcnt(0) lgkmcnt(0)")
    if P.get('stamps'): e("s_memtime s[82:83]")
    e("s_barrier")
    e("s_mul_i32 s40, s26, 14336")
    e("v_lshlrev_b32 v%d, 4, v%d" % (V_T1, V_LANE))
    e("v_add_u32 v%d, s40, v%d" % (V_T2, V_T1))
    e("s_xor_b32 s41, s26, 4")
    e("s_mul_i32 s41, s41, 14336")
    e("v_add_u32 v%d, s41, v%d" % (V_T3, V_T1))
    if not LASTOV: e("s_nop 7"); e("s_nop 7")
    e("s_cmp_eq_u32 s28, 0")
    e("s_cbranch_scc0 G1_EP1")
    def ep(mat):
        own = [2 * mat, 2 * mat + 1]; snd = [2 - 2 * mat, 3 - 2 * mat]
        wr = []
        for k, mi in enumerate(snd):
            for nj in range(7):
                a = acc(mi, nj)
                wr.append("ds_write_b128 v%d, v[%d:%d] offset:%d" % (V_T2, a, a + 3, (k * 7 + nj) * 1024))
        if LASTOV:
            b = (G1_STEPS - 1) & 1
            def mfma(mi, nj):
                a = acc(mi, nj)
                return ("v_mfma_f32_16x16x32_bf16 v[%d:%d], a[%d:%d], a[%d:%d], v[%d:%d]" %
                        (a, a + 3, wf(b, nj), wf(b, nj) + 3, xf(b, mi), xf(b, mi) + 3, a, a + 3))
            for mi in snd:
                for nj in range(7): e(mfma(mi, nj))
            rest = [mfma(mi, nj) for mi in own for nj in range(7)]
            for i, m in enumerate(rest):
                e(m)
                if i >= 0: e(wr[i])
            e("s_nop 7")
        else:
            for w in wr: e(w)
        e("s_waitcnt lgkmcnt(0)")
        e("s_barrier")
        if P.get('stamps'): e("s_memtime s[78:79]")
        for k, mi in enumerate(snd):
            for nj in range(7):
                a = acc(mi, nj)
                e("ds_read_b128 v[%d:%d], v%d offset:%d" % (a, a + 3, V_T3, (k * 7 + nj) * 1024))
        C1, C0, ONE = T0, T0 + 2, T0 + 4
        c = -2.0 * 0.7978845608028654 * 1.4426950408889634
        import struct
        def f2u(x): return struct.unpack("<I", struct.pack("<f", x))[0]
        for r in (C1, C1 + 1): e("v_mov_b32 v%d, 0x%08x" % (r, f2u(c * 0.044715)))
        for r in (C0, C0 + 1): e("v_mov_b32 v%d, 0x%08x" % (r, f2u(c)))
        for r in (ONE, ONE + 1): e("v_mov_b32 v%d, 1.0" % r)
        e("s_waitcnt lgkmcnt(0)")
        TT = T0 + 8
        pairs = []
        for k in range(2):
            for nj in range(7):
                for hf in range(2):
                    o = acc(own[k], nj) + 2 * hf; r = acc(snd[k], nj) + 2 * hf
                    gg, uu = (o, r) if mat == 0 else (r, o)
                    pairs.append((gg, uu, k, nj, hf))
        for b0 in range(0, len(pairs), 4):
            grp = pairs[b0:b0 + 4]
            for i, (gg, uu, k, nj, hf) in enumerate(grp):
                t = TT + 2 * i
                e("v_pk_mul_f32 v[%d:%d], v[%d:%d], v[%d:%d]" % (t, t + 1, gg, gg + 1, gg, gg + 1))
            for i, (gg, uu, k, nj, hf) in enumerate(grp):
                t = TT + 2 * i
                e("v_pk_fma_f32 v[%d:%d], v[%d:%d], v[%d:%d], v[%d:%d]" % (t, t + 1, t, t + 1, C1, C1 + 1, C0, C0 + 1))
            for i, (gg, uu, k, nj, hf) in enumerate(grp):
                t = TT + 2 * i
                e("v_pk_mul_f32 v[%d:%d], v[%d:%d], v[%d:%d]" % (t, t + 1, t, t + 1, gg, gg + 1))
            for i in range(len(grp)):
                t = TT + 2 * i
                e("v_exp_f32 v%d, v%d" % (t, t)); e("v_exp_f32 v%d, v%d" % (t + 1, t + 1))
            for i, (gg, uu, k, nj, hf) in enumerate(grp):
                e("v_pk_mul_f32 v[%d:%d], v[%d:%d], v[%d:%d]" % (gg, gg + 1, gg, gg + 1, uu, uu + 1))
            for i in range(len(grp)):
                t = TT + 2 * i
                e("v_pk_add_f32 v[%d:%d], v[%d:%d], v[%d:%d]" % (t, t + 1, t, t + 1, ONE, ONE + 1))
            for i in range(len(grp)):
                t = TT + 2 * i
                e("v_rcp_f32 v%d, v%d" % (t, t)); e("v_rcp_f32 v%d, v%d" % (t + 1, t + 1))
            e("s_nop 0")
            for i, (gg, uu, k, nj, hf) in enumerate(grp):
                t = TT + 2 * i
                e("v_pk_mul_f32 v[%d:%d], v[%d:%d], v[%d:%d]" % (t, t + 1, t, t + 1, gg, gg + 1))
            for i, (gg, uu, k, nj, hf) in enumerate(grp):
                t = TT + 2 * i
                d = acc(own[k], 0) + nj * 2 + hf
                e("v_cvt_pk_bf16_f32 v%d, v%d, v%d" % (d, t, t + 1))
        if P.get('stamps'): e("s_memtime s[80:81]")
        e("s_lshl_b32 s40, s24, 4")
        e("s_lshl_b32 s41, s27, 2")
        e("s_add_u32 s40, s40, s41")
        e("s_add_u32 s40, s40, %d" % own[0])
        e("s_mul_i32 s40, s40, 114688")
        e("s_mul_i32 s41, s25, 7")
        e("s_lshr_b32 s42, s41, 1")
        e("s_lshl_b32 s42, s42, 10")
        e("s_add_u32 s40, s40, s42")
        e("s_add_u32 s43, s40, 114688")
        e("s_and_b32 s41, s25, 1")
        e("s_cmp_eq_u32 s41, 0")
        e("s_cbranch_scc0 G1_ODD%d" % mat)
        for k, so in ((0, "s40"), (1, "s43")):
            d = acc(own[k], 0)
            for pi in range(3):
                e("buffer_store_dwordx4 v[%d:%d], v%d, s[20:23], %s offen offset:%d" % (d + 4 * pi, d + 4 * pi + 3, V_T1, so, pi * 1024))
            e("buffer_store_dwordx2 v[%d:%d], v%d, s[20:23], %s offen offset:%d" % (d + 12, d + 13, V_T1, so, 3 * 1024))
        e("s_branch G1_END")
        g.label("G1_ODD%d" % mat)
        for k, so in ((0, "s40"), (1, "s43")):
            d = acc(own[k], 0)
            e("buffer_store_dwordx2 v[%d:%d], v%d, s[20:23], %s offen offset:8" % (d, d + 1, V_T1, so))
            for pi in range(3):
                e("buffer_store_dwordx4 v[%d:%d], v%d, s[20:23], %s offen offset:%d" % (d + 2 + 4 * pi, d + 2 + 4 * pi + 3, V_T1, so, (pi + 1) * 1024))
        e("s_branch G1_END")
    ep(0)
    g.label("G1_EP1")
    ep(1)
    g.label("G1_END")
    stamp(g, P, 3)
    stamp_dump(g, P, ("s20", "s21"), 9)
    g.label("G1_EXIT")
    e("s_endpgm")

G2_SLOT = 32768
G2_STAGES = 14
G2_US = 56

def gemm2(g, P):
    e = g.e
    G2_RING = P.get('g2_ring', 8)
    G2_NSLOT = P.get('g2_nslot', 4)
    WF0 = G2_RING * 8
    ACC = 16
    def acc(mi, nj): return ACC + (mi * 4 + nj) * 4
    def hf(u, mi): return (u % G2_RING) * 8 + mi * 4
    def wf(b, nj): return WF0 + b * 16 + nj * 4
    V_LANE, V_WVO, V_HVO, V_T1, V_T2, V_T3 = 1, 2, 3, 5, 6, 7
    V_RB = 48
    NSP = (G2_NSLOT + 1) // 2
    g.label("gemm2_kernel")
    e("s_cmp_ge_u32 s2, 256")
    e("s_cbranch_scc1 G2_EXIT")
    stamp(g, P, 0)
    e("s_load_dwordx2 s[6:7], s[0:1], 32")
    e("s_load_dwordx2 s[10:11], s[0:1], 48")
    e("v_lshrrev_b32 v%d, 6, v0" % V_T1)
    e("v_and_b32 v%d, 63, v0" % V_LANE)
    e("s_and_b32 s40, s2, 7")
    e("v_readfirstlane_b32 s26, v%d" % V_T1)
    e("s_lshr_b32 s41, s2, 3")
    e("s_and_b32 s42, s40, 3")
    e("s_lshl_b32 s42, s42, 2")
    e("s_and_b32 s43, s41, 3")
    e("s_add_u32 s24, s42, s43")
    e("s_lshr_b32 s42, s40, 2")
    e("s_lshl_b32 s42, s42, 3")
    e("s_lshr_b32 s43, s41, 2")
    e("s_add_u32 s25, s42, s43")
    e("s_and_b32 s27, s26, 3")
    e("s_lshr_b32 s28, s26, 2")
    e("v_lshlrev_b32 v%d, 4, v%d" % (V_WVO, V_LANE))
    e("v_lshlrev_b32 v%d, 4, v%d" % (V_HVO, V_LANE))
    e("v_add_u32 v%d, 114688, v%d" % (V_HVO + 1, V_HVO))
    e("s_lshl_b32 s44, s26, 12")
    e("s_mul_i32 s41, s25, 458752")
    e("s_add_u32 s29, s44, s41")
    e("s_lshl_b32 s40, s24, 3")
    e("s_lshl_b32 s41, s27, 1")
    e("s_add_u32 s40, s40, s41")
    e("s_mul_i32 s40, s40, 114688")
    e("s_lshl_b32 s41, s28, 10")
    e("s_add_u32 s30, s40, s41")
    e("s_mov_b32 s14, %d" % (0 if (P.get('noload') or P.get('noload_a')) else F * D * 2)); e("s_mov_b32 s15, 0x00020000")
    e("s_mov_b32 s18, %d" % (0 if (P.get('noload') or P.get('noload_b')) else H_BYTES)); e("s_mov_b32 s19, 0x00020000")
    e("s_waitcnt lgkmcnt(0)")
    e("s_mov_b32 s16, s10"); e("s_and_b32 s17, s11, 0xffff")
    e("s_add_u32 s12, s16, %d" % WREL_OFF); e("s_addc_u32 s13, s17, 0")

    def dma4(stage):
        def f():
            if stage >= G2_STAGES: return
            e("s_add_u32 m0, s44, %d" % ((stage % G2_NSLOT) * G2_SLOT))
            e("s_add_u32 s40, s29, %d" % (stage * 32768))
            for j in range(4):
                e("buffer_load_dwordx4 v%d, s[12:15], s40 offen offset:%d lds" % (V_WVO, j * 1024))
                g.vm_issue(('d', stage, j))
        return f
    def dma1(stage, j):
        def f():
            if stage >= G2_STAGES: return
            if j == 0:
                e("s_add_u32 s45, s44, %d" % ((stage % G2_NSLOT) * G2_SLOT))
                e("s_add_u32 s41, s29, %d" % (stage * 32768))
            e("s_mov_b32 m0, s45")
            e("s_nop 0")
            e("buffer_load_dwordx4 v%d, s[12:15], s41 offen offset:%d lds" % (V_WVO, j * 1024))
            g.vm_issue(('d', stage, j))
        return f
    def ldh(u, mi):
        def f():
            if u >= G2_US: return
            r = hf(u, mi)
            if mi == 0 and (u & 1) == 0:
                e("s_add_u32 s31, s30, %d" % (u * 2048))
            e("buffer_load_dwordx4 a[%d:%d], v%d, s[16:19], s31 offen offset:%d" % (r, r + 3, V_HVO + mi, (u & 1) * 2048))
            g.vm_issue(('h', u, mi))
        return f
    def rd_w(u, nj, q):
        def f():
            if u >= G2_US: return
            r = wf(u & 1, nj) + 2 * q
            sl = (u >> 2) % G2_NSLOT
            e("ds_read_b64_tr_b16 a[%d:%d], v%d offset:%d" % (r, r + 1, V_RB + (sl >> 1) * 4 + nj, (sl & 1) * G2_SLOT + ((u & 3) * 64 + 16 * q) * 128))
            g.lg_issue(('w', u, nj, q))
        return f
    hq = list(range(G2_RING - 1))
    for st in range(G2_NSLOT):
        dma4(st)()
        take = hq[:4] if st < G2_NSLOT - 1 else hq
        hq = hq[len(take):]
        for u in take:
            for mi in range(2): ldh(u, mi)()
    e("v_lshrrev_b32 v%d, 3, v%d" % (V_T1, V_LANE))
    e("v_and_b32 v%d, 3, v%d" % (V_T1, V_T1))
    e("v_lshlrev_b32 v%d, 1, v%d" % (V_T1, V_T1))
    e("v_lshrrev_b32 v%d, 2, v%d" % (V_T2, V_LANE))
    e("v_lshlrev_b32 v%d, 7, v%d" % (V_T2, V_T2))
    e("v_and_b32 v%d, 3, v%d" % (V_T3, V_LANE))
    e("v_lshl_add_u32 v%d, v%d, 3, v%d" % (V_T2, V_T3, V_T2))
    e("s_lshl_b32 s40, s28, 12")
    e("v_add_u32 v%d, s40, v%d" % (V_T2, V_T2))
    for nj in range(4):
        e("v_xor_b32 v%d, %d, v%d" % (V_T3, 2 * nj, V_T1))
        e("v_lshl_add_u32 v%d, v%d, 4, v%d" % (V_RB + nj, V_T3, V_T2))
        for sp in range(1, NSP):
            e("v_add_u32 v%d, %d, v%d" % (V_RB + sp * 4 + nj, sp * 65536, V_RB + nj))
    e("s_mov_b32 s20, s6"); e("s_and_b32 s21, s7, 0xffff"); e("s_mov_b32 s22, %d" % (S * D * 2)); e("s_mov_b32 s23, 0x00020000")
    for r in range(ACC, ACC + 32): e("v_mov_b32 v%d, 0" % r)
    g.wait('p0', vm=[('d', 0, j) for j in range(4)])
    e("s_barrier")
    stamp(g, P, 1)
    for nj in range(4):
        for q in range(2): rd_w(0, nj, q)()

    def wstep(u):
        b = u & 1
        last = (u & 3) == 3
        t = u >> 2
        if last and t + 1 < G2_STAGES:
            g.wait(('b', u), vm=[('d', t + 1, j) for j in range(4)] + [('h', u, 0), ('h', u, 1)], lg='all')
            e("s_barrier")
        else:
            g.wait(('w', u), vm=[('h', u, 0), ('h', u, 1)], lg=[('w', u, nj, q) for nj in range(4) for q in range(2)])
        mf = []
        for nj in range(4):
            for mi in range(2):
                a = acc(mi, nj)
                mf.append("v_mfma_f32_16x16x32_bf16 v[%d:%d], a[%d:%d], a[%d:%d], v[%d:%d]" %
                          (a, a + 3, wf(b, nj), wf(b, nj) + 3, hf(u, mi), hf(u, mi) + 3, a, a + 3))
        extra = {}
        reads = [rd_w(u + 1, nj, q) for nj in range(4) for q in range(2)]
        for i, r in enumerate(reads): extra.setdefault(i // P.get('g2_rdper', 1), []).append(r)
        extra.setdefault(P.get('g2_h0', 1), []).append(ldh(u + G2_RING - 1, 0))
        extra.setdefault(P.get('g2_h1', 5), []).append(ldh(u + G2_RING - 1, 1))
        if P.get('g2_spread'):
            tt = (u + 1) >> 2
            j = (u + 1) & 3
            if u >= 3: extra.setdefault(P.get('g2_dpos', 7), []).append(dma1(tt + G2_NSLOT - 2 + 1 - 1 + 1 - 1, j) if False else dma1(tt - 1 + G2_NSLOT, j))
        elif last:
            extra.setdefault(P.get('g2_dpos', 7), []).append(dma4(t + G2_NSLOT))
        interleave(g, mf, extra)
    for u in range(G2_US): wstep(u)
    stamp(g, P, 2)
    e("s_waitcnt vmcnt(0) lgkmcnt(0)")
    e("s_barrier")
    e("s_lshl_b32 s40, s26, 12")
    e("v_lshlrev_b32 v%d, 4, v%d" % (V_T1, V_LANE))
    e("v_add_u32 v%d, s40, v%d" % (V_T2, V_T1))
    e("s_xor_b32 s41, s26, 4")
    e("s_lshl_b32 s41, s41, 12")
    e("v_add_u32 v%d, s41, v%d" % (V_T3, V_T1))
    e("s_nop 7"); e("s_nop 7")
    e("s_cmp_eq_u32 s28, 0")
    e("s_cbranch_scc0 G2_EP1")
    def ep(kh):
        own, snd = kh, 1 - kh
        for nj in range(4):
            a = acc(snd, nj)
            e("ds_write_b128 v%d, v[%d:%d] offset:%d" % (V_T2, a, a + 3, nj * 1024))
        e("s_waitcnt lgkmcnt(0)")
        e("s_barrier")
        for nj in range(4):
            a = acc(snd, nj)
            e("ds_read_b128 v[%d:%d], v%d offset:%d" % (a, a + 3, V_T3, nj * 1024))
        e("v_and_b32 v%d, 15, v%d" % (V_T1, V_LANE))
        e("v_lshrrev_b32 v%d, 4, v%d" % (V_T2, V_LANE))
        e("v_lshlrev_b32 v%d, 3, v%d" % (V_T2, V_T2))
        e("v_lshl_add_u32 v%d, v%d, 11, v%d" % (V_T1, V_T1, V_T2))
        e("s_lshl_b32 s40, s24, 7")
        e("s_lshl_b32 s41, s27, 5")
        e("s_add_u32 s40, s40, s41")
        e("s_add_u32 s40, s40, %d" % (16 * own))
        e("s_lshl_b32 s40, s40, 11")
        e("s_lshl_b32 s41, s25, 7")
        e("s_add_u32 s40, s40, s41")
        e("s_waitcnt lgkmcnt(0)")
        for nj in range(4):
            a = acc(own, nj); r = acc(snd, nj)
            e("v_pk_add_f32 v[%d:%d], v[%d:%d], v[%d:%d]" % (a, a + 1, a, a + 1, r, r + 1))
            e("v_pk_add_f32 v[%d:%d], v[%d:%d], v[%d:%d]" % (a + 2, a + 3, a + 2, a + 3, r + 2, r + 3))
        for nj in range(4):
            a = acc(own, nj)
            e("v_cvt_pk_bf16_f32 v%d, v%d, v%d" % (a, a, a + 1))
            e("v_cvt_pk_bf16_f32 v%d, v%d, v%d" % (a + 1, a + 2, a + 3))
        for nj in range(4):
            a = acc(own, nj)
            e("buffer_store_dwordx2 v[%d:%d], v%d, s[20:23], s40 offen offset:%d" % (a, a + 1, V_T1, nj * 32))
        e("s_branch G2_END")
    ep(0)
    g.label("G2_EP1")
    ep(1)
    g.label("G2_END")
    stamp(g, P, 3)
    if P.get('stamps'): e("s_add_u32 s16, s16, 0x1000000"); e("s_addc_u32 s17, s17, 0")
    stamp_dump(g, P, ("s16", "s17"), 6)
    g.label("G2_EXIT")
    e("s_endpgm")

HEADER = """; Kernarg layout for this problem (56 bytes, ptrs only, base s[0:1]):
; @launch kernel=gemm1_kernel grid=(256,1,1) block=(512,1,1) lds=%d
; @launch kernel=gemm2_kernel grid=(256,1,1) block=(512,1,1) lds=%d
.amdgcn_target "amdgcn-amd-amdhsa--gfx950"
.text
"""
def kd(name, nv, acc_off, ns=64):
    return """.amdhsa_kernel %s
  .amdhsa_next_free_vgpr %d
  .amdhsa_next_free_sgpr %d
  .amdhsa_accum_offset %d
  .amdhsa_group_segment_fixed_size 0
  .amdhsa_kernarg_size 56
  .amdhsa_user_sgpr_count 2
  .amdhsa_user_sgpr_kernarg_segment_ptr 1
  .amdhsa_system_sgpr_workgroup_id_x 1
.end_amdhsa_kernel
""" % (name, nv, ns, acc_off)

def build(P):
    out = [HEADER % (G1_LDS, G2_SLOT * P.get('g2_nslot', 4))]
    for name, fn in (("gemm1_kernel", gemm1), ("gemm2_kernel", gemm2)):
        g = Sim()
        g.nomfma = P.get('nomfma', False)
        g.drop = P.get('drop', ())
        fn(g, P)
        g.emit = True
        fn(g, P)
        out.append(".globl %s\n.p2align 8\n.type %s,@function\n" % (name, name) + "\n".join(g.lines) + "\n")
    out.append('.section .rodata,"a"\n.p2align 6\n' + kd("gemm1_kernel", 256, 168, 96) + ".p2align 6\n" + kd("gemm2_kernel", 64 + P.get("g2_ring", 8) * 8 + 32, 64, 80))
    return "".join(out)

DEFAULT = dict(g1_rd0=0, g1_dma=[3, 12, 20], g2_rdper=2, g2_h0=4, g2_h1=6, g2_dma=[4,5,6,7], wrel=1, g1_pf=1, g1_pfd=2)
if __name__ == "__main__":
    P = dict(DEFAULT)
    for a in sys.argv[2:]:
        k, v = a.split("=")
        P[k] = eval(v)
    txt = build(P)
    path = sys.argv[1] if len(sys.argv) > 1 else "standalone__geglu_ffn__prompt.s"
    open(path, "w").write(txt)
    print("wrote", path, len(txt))
```

```python
import sys

S, D, F = 2048, 1024, 3584
WREL_OFF = 0x1000000
H_BYTES = S * F * 2

class Sim:
    def __init__(self):
        self.emit = False
        self.lines = []
        self.vm = []; self.lg = []
        self.vmN = {}; self.lgN = {}
    def e(self, s):
        if self.emit:
            for sub in getattr(self, 'drop', ()):
                if sub in s: return
            self.lines.append("  " + s)
    def label(self, s):
        if self.emit: self.lines.append(s + ":")
    def vm_issue(self, tag):
        if not self.emit: self.vm.append(tag)
    def lg_issue(self, tag):
        if not self.emit: self.lg.append(tag)
    def _n(self, q, tags):
        idx = -1
        for t in tags:
            for i in range(len(q) - 1, -1, -1):
                if q[i] == t:
                    idx = max(idx, i); break
            else:
                raise KeyError(("tag never issued", t))
        return len(q) - 1 - idx
    def wait(self, site, vm=None, lg=None):
        if not self.emit:
            if vm is not None:
                n = 0 if vm == 'all' else self._n(self.vm, vm)
                self.vmN[site] = min(self.vmN.get(site, 1 << 30), n)
            if lg is not None:
                n = 0 if lg == 'all' else self._n(self.lg, lg)
                self.lgN[site] = min(self.lgN.get(site, 1 << 30), n)
            return
        parts = []
        if vm is not None and self.vmN[site] <= 63: parts.append("vmcnt(%d)" % self.vmN[site])
        if lg is not None: parts.append("lgkmcnt(%d)" % min(self.lgN[site], 15))
        if parts: self.e("s_waitcnt " + " ".join(parts))

def stamp(g, P, idx):
    if P.get('stamps'):
        g.e("s_memtime s[%d:%d]" % (66 + 2 * idx, 67 + 2 * idx))
        if idx == 0: g.e("s_memrealtime s[74:75]")
        if idx == 3: g.e("s_memrealtime s[76:77]")
def stamp_dump(g, P, wsreg, n):
    if not P.get('stamps'): return
    e = g.e
    e("s_waitcnt lgkmcnt(0) vmcnt(0)")
    e("s_add_u32 s60, %s, 0x8000000" % wsreg[0]); e("s_addc_u32 s61, %s, 0" % wsreg[1])
    e("s_mov_b32 s62, 0x1000000"); e("s_mov_b32 s63, 0x00020000")
    e("s_lshl_b32 s64, s2, 3"); e("s_add_u32 s64, s64, s26"); e("s_lshl_b32 s64, s64, 6")
    e("v_mov_b32 v11, 0")
    for i in range(n):
        e("v_mov_b32 v12, s%d" % (66 + 2 * i)); e("v_mov_b32 v13, s%d" % (67 + 2 * i))
        e("buffer_store_dwordx2 v[12:13], v11, s[60:63], s64 offen offset:%d" % (8 * i))
    e("s_waitcnt vmcnt(0)")

def interleave(g, main, extra):
    for f in extra.get(-1, []):
        f()
    for i, m in enumerate(main):
        if not getattr(g, 'nomfma', False): g.e(m)
        for f in extra.get(i, []):
            f()

G1_XSLOT = 32768; G1_NX = 3
G1_WSLOT = 14336; G1_NW = 4
G1_XB = G1_WSLOT * G1_NW
G1_LDS = G1_XB + G1_XSLOT * G1_NX
G1_STEPS = 32

def gemm1(g, P):
    ACC = 16
    def acc(mi, nj): return ACC + (mi * 7 + nj) * 4
    T0 = 128
    CPY = 152
    def xf(b, mi): return b * 44 + mi * 4
    def wf(b, nj): return b * 44 + 16 + nj * 4
    V_LANE, V_XVO, V_WVO, V_XRB, V_WRB, V_T1, V_T2, V_T3, V_PFX, V_PFW = 1, 2, 6, 7, 11, 12, 13, 14, 15, 0
    e = g.e
    g.label("gemm1_kernel")
    e("s_cmp_ge_u32 s2, 256")
    e("s_cbranch_scc1 G1_EXIT")
    stamp(g, P, 0)
    e("s_load_dwordx4 s[4:7], s[0:1], 0")
    e("s_load_dwordx4 s[8:11], s[0:1], 16")
    e("s_load_dwordx2 s[48:49], s[0:1], 48")
    e("v_lshrrev_b32 v%d, 6, v0" % V_T1)
    e("v_and_b32 v%d, 63, v0" % V_LANE)
    e("s_and_b32 s40, s2, 7")
    e("v_readfirstlane_b32 s26, v%d" % V_T1)
    e("s_lshr_b32 s41, s2, 3")
    e("s_and_b32 s42, s40, 1")
    e("s_lshl_b32 s42, s42, 2")
    e("s_and_b32 s43, s41, 3")
    e("s_add_u32 s24, s42, s43")
    e("s_lshr_b32 s42, s40, 1")
    e("s_lshl_b32 s42, s42, 3")
    e("s_lshr_b32 s43, s41, 2")
    e("s_add_u32 s25, s42, s43")
    e("s_and_b32 s27, s26, 3")
    e("s_lshr_b32 s28, s26, 2")
    e("v_mul_u32_u24 v%d, 37, v%d" % (V_T1, V_LANE))
    e("v_lshrrev_b32 v%d, 9, v%d" % (V_T1, V_T1))
    e("v_mul_u32_u24 v%d, 14, v%d" % (V_T2, V_T1))
    e("v_sub_u32 v%d, v%d, v%d" % (V_T2, V_LANE, V_T2))
    e("v_mul_u32_u24 v%d, 7168, v%d" % (V_T1, V_T1))
    e("v_lshl_add_u32 v%d, v%d, 4, v%d" % (V_WVO, V_T2, V_T1))
    e("v_lshrrev_b32 v%d, 3, v%d" % (V_T1, V_LANE))
    e("v_lshrrev_b32 v%d, 4, v%d" % (V_T2, V_LANE))
    e("v_and_b32 v%d, 7, v%d" % (V_T3, V_LANE))
    e("v_xor_b32 v%d, v%d, v%d" % (V_T2, V_T2, V_T3))
    e("v_lshlrev_b32 v%d, 4, v%d" % (V_T2, V_T2))
    e("v_lshl_add_u32 v%d, v%d, 11, v%d" % (V_XVO, V_T1, V_T2))
    e("v_xor_b32 v%d, 64, v%d" % (V_T1, V_XVO))
    e("v_add_u32 v%d, 16384, v%d" % (V_XVO + 1, V_T1))
    e("v_add_u32 v%d, 32768, v%d" % (V_XVO + 2, V_XVO))
    e("v_add_u32 v%d, 49152, v%d" % (V_XVO + 3, V_T1))
    e("s_lshl_b32 s40, s24, 19")
    e("s_lshl_b32 s41, s26, 16")
    e("s_add_u32 s29, s40, s41")
    e("s_and_b32 s40, s27, 1")
    e("s_lshl_b32 s40, s40, 4")
    e("s_lshr_b32 s41, s27, 1")
    e("s_lshl_b32 s41, s41, 2")
    e("s_add_u32 s40, s40, s41")
    e("s_mul_i32 s40, s40, 7168")
    e("s_mul_i32 s41, s25, 224")
    e("s_add_u32 s31, s40, s41")
    e("s_lshl_b32 s44, s26, 12")
    e("s_add_u32 s44, s44, %d" % G1_XB)
    e("s_mul_i32 s45, s28, 7168")
    e("s_mul_i32 s40, s27, 1792")
    e("s_add_u32 s45, s45, s40")
    e("s_mov_b32 s36, -1"); e("s_mov_b32 s37, 0x00ffffff")
    e("s_mov_b32 s14, %d" % (0 if (P.get('noload') or P.get('noload_a')) else S * D * 2)); e("s_mov_b32 s15, 0x00020000")
    e("s_mov_b32 s18, %d" % (0 if (P.get('noload') or P.get('noload_b')) else D * F * 2)); e("s_mov_b32 s19, 0x00020000")
    e("s_cmp_eq_u32 s28, 0")
    e("s_waitcnt lgkmcnt(0)")
    e("s_cselect_b32 s16, s6, s8"); e("s_cselect_b32 s17, s7, s9"); e("s_and_b32 s17, s17, 0xffff")
    e("s_mov_b32 s12, s4"); e("s_and_b32 s13, s5, 0xffff")

    ROT = P.get('g1_rot', 0)
    if ROT:
        e("s_and_b32 s40, s2, 7")
        e("s_mul_i32 s40, s40, %d" % ROT)
        e("s_and_b32 s40, s40, 15")
        e("s_sub_u32 s33, 16, s40")
        e("s_lshl_b32 s41, s40, 7")
        e("s_add_u32 s29, s29, s41")
        e("s_sub_u32 s30, s29, 2048")
        e("s_mul_i32 s41, s40, %d" % (64 * 7168))
        e("s_add_u32 s31, s31, s41")
        e("s_sub_u32 s32, s31, %d" % (1024 * 7168))
    def dma_x(tile, j):
        def f():
            if tile >= 16: return
            e("s_add_u32 m0, s44, %d" % (((tile % G1_NX) * G1_XSLOT + j * 1024 - tile * 128) & 0xffffffff))
            if ROT:
                e("s_cmp_gt_u32 s33, %d" % tile)
                e("s_cselect_b32 s34, s29, s30")
            else:
                e("s_nop 0")
            e("buffer_load_dwordx4 v%d, s[12:15], %s offen offset:%d lds" % (V_XVO + j, "s34" if ROT else "s29", tile * 128))
            g.vm_issue(('x', tile, j))
        return f
    def dma_w2(stage):
        def f():
            if stage >= G1_STEPS: return
            e("s_mov_b64 exec, s[36:37]")
            if ROT:
                e("s_cmp_gt_u32 s33, %d" % (stage >> 1))
                e("s_cselect_b32 s35, s31, s32")
            for j in range(2):
                e("s_add_u32 m0, s45, %d" % ((stage % G1_NW) * G1_WSLOT + j * 896))
                e("s_add_u32 s40, %s, %d" % ("s35" if ROT else "s31", stage * 32 * 7168 + j * 8 * 7168))
                e("buffer_load_dwordx4 v%d, s[16:19], s40 offen lds" % V_WVO)
                g.vm_issue(('w', stage, j))
            e("s_mov_b64 exec, -1")
        return f
    dma_w2(0)()
    for j in range(4): dma_x(0, j)()
    dma_w2(1)()
    dma_w2(2)()
    for j in range(4): dma_x(1, j)()
    dma_w2(3)()
    for j in range(2): dma_x(2, j)()
    e("v_and_b32 v%d, 15, v%d" % (V_T1, V_LANE))
    e("v_lshrrev_b32 v%d, 1, v%d" % (V_T2, V_T1))
    e("v_lshrrev_b32 v%d, 4, v%d" % (V_T3, V_LANE))
    e("v_xor_b32 v%d, v%d, v%d" % (V_T2, V_T2, V_T3))
    e("v_lshlrev_b32 v%d, 4, v%d" % (V_T2, V_T2))
    e("v_lshl_add_u32 v%d, v%d, 7, v%d" % (V_XRB, V_T1, V_T2))
    e("s_lshl_b32 s40, s27, 13")
    e("s_add_u32 s40, s40, %d" % G1_XB)
    e("v_add_u32 v%d, s40, v%d" % (V_XRB, V_XRB))
    e("v_xor_b32 v%d, 64, v%d" % (V_XRB + 1, V_XRB))
    e("v_add_u32 v%d, 0x10000, v%d" % (V_XRB + 2, V_XRB))
    e("v_add_u32 v%d, 0x10000, v%d" % (V_XRB + 3, V_XRB + 1))
    e("v_lshrrev_b32 v%d, 2, v%d" % (V_T1, V_LANE))
    e("v_mul_u32_u24 v%d, 224, v%d" % (V_T1, V_T1))
    e("v_and_b32 v%d, 3, v%d" % (V_T2, V_LANE))
    e("v_lshl_add_u32 v%d, v%d, 3, v%d" % (V_WRB, V_T2, V_T1))
    e("s_mul_i32 s40, s28, 7168")
    e("v_add_u32 v%d, s40, v%d" % (V_WRB, V_WRB))
    e("s_mov_b32 s20, s48"); e("s_and_b32 s21, s49, 0xffff"); e("s_mov_b32 s22, %d" % H_BYTES); e("s_mov_b32 s23, 0x00020000")
    if P.get('wrel'):
        e("v_lshlrev_b32 v%d, 4, v%d" % (V_PFX, V_LANE))
        e("s_mul_i32 s62, s2, 28672")
        e("s_lshl_b32 s40, s26, 12")
        e("s_add_u32 s62, s62, s40")
        e("s_mov_b32 s48, s10"); e("s_and_b32 s49, s11, 0xffff"); e("s_mov_b32 s50, %d" % (F * D * 2)); e("s_mov_b32 s51, 0x00020000")
    def wrel_load():
        for j in range(4):
            e("buffer_load_dwordx4 v[%d:%d], v%d, s[48:51], s62 offen offset:%d" % (CPY + 4 * j, CPY + 4 * j + 3, V_PFX, 1024 * j))
            g.vm_issue(('cp', j))
    def wrel_store():
        e("s_add_u32 s52, s20, %d" % WREL_OFF); e("s_addc_u32 s53, s21, 0"); e("s_mov_b32 s54, %d" % (F * D * 2)); e("s_mov_b32 s55, 0x00020000")
        e("v_lshrrev_b32 v%d, 3, v%d" % (V_T1, V_LANE))
        e("s_mov_b32 s40, 458752")
        e("v_mul_lo_u32 v%d, v%d, s40" % (V_T1, V_T1))
        e("v_and_b32 v%d, 7, v%d" % (V_T2, V_LANE))
        e("s_mul_i32 s41, s2, 14")
        for j in range(4):
            e("s_lshl_b32 s42, s26, 1")
            e("s_add_u32 s42, s42, %d" % (j >> 1))
            e("s_add_u32 s43, s41, s42")
            e("s_lshr_b32 s40, s43, 1"); e("s_and_b32 s40, s40, 3"); e("s_lshl_b32 s40, s40, 1")
            e("v_xor_b32 v%d, s40, v%d" % (V_T3, V_T2))
            e("v_lshl_add_u32 v%d, v%d, 4, v%d" % (V_PFW, V_T3, V_T1))
            e("s_lshl_b32 s43, s43, 7")
            if j & 1: e("s_add_u32 s43, s43, %d" % (8 * 458752))
            e("s_cmp_lt_u32 s42, 14")
            e("s_cselect_b32 s43, s43, 0x7fff0000")
            e("buffer_store_dwordx4 v[%d:%d], v%d, s[52:55], s43 offen" % (CPY + 4 * j, CPY + 4 * j + 3, V_PFW))
    PF = P.get('g1_pf', 0); PFD = P.get('g1_pfd', 3)
    V_PX, V_PW, V_DUM = 144, 145, 146
    if PF:
        e("s_mov_b32 s52, s6"); e("s_and_b32 s53, s7, 0xffff"); e("s_mov_b32 s54, %d" % (D * F * 2)); e("s_mov_b32 s55, 0x00020000")
        e("s_mov_b32 s56, s8"); e("s_and_b32 s57, s9, 0xffff"); e("s_mov_b32 s58, %d" % (D * F * 2)); e("s_mov_b32 s59, 0x00020000")
        e("v_and_b32 v%d, 31, v%d" % (V_T1, V_LANE))
        e("v_lshrrev_b32 v%d, 5, v%d" % (V_T2, V_LANE))
        e("v_lshlrev_b32 v%d, 7, v%d" % (V_T2, V_T2))
        e("v_lshl_add_u32 v%d, v%d, 11, v%d" % (V_PX, V_T1, V_T2))
        e("v_mul_u32_u24 v%d, 37, v%d" % (V_T1, V_LANE))
        e("v_lshrrev_b32 v%d, 9, v%d" % (V_T1, V_T1))
        e("v_mul_u32_u24 v%d, 14, v%d" % (V_T2, V_T1))
        e("v_sub_u32 v%d, v%d, v%d" % (V_T2, V_LANE, V_T2))
        e("v_mul_u32_u24 v%d, 7168, v%d" % (V_T1, V_T1))
        e("v_lshl_add_u32 v%d, v%d, 7, v%d" % (V_PW, V_T2, V_T1))
        e("s_and_b32 s40, s2, 1")
        e("s_lshl_b32 s40, s40, 10")
        e("s_lshr_b32 s41, s2, 3")
        e("s_lshl_b32 s42, s41, 5")
        e("s_add_u32 s40, s40, s42")
        e("s_lshl_b32 s60, s40, 11")
        e("s_and_b32 s40, s2, 7")
        e("s_lshr_b32 s40, s40, 1")
        e("s_mul_i32 s40, s40, 1792")
        e("s_mul_i32 s42, s41, %d" % (4 * 7168))
        e("s_add_u32 s61, s40, s42")
    def prefetch(G):
        def f():
            if G >= 8: return
            e("s_cmp_eq_u32 s26, %d" % (G & 7))
            e("s_cbranch_scc0 G1_PF%d" % G)
            e("s_add_u32 s41, s61, %d" % (G * 128 * 7168))
            e("buffer_load_dword v%d, v%d, s[12:15], s60 offen offset:%d" % (V_DUM, V_PX, G * 256))
            e("buffer_load_dword v%d, v%d, s[52:55], s41 offen" % (V_DUM, V_PW))
            e("buffer_load_dword v%d, v%d, s[56:59], s41 offen" % (V_DUM, V_PW))
            g.label("G1_PF%d" % G)
        return f
    def rd_x(step, mi):
        def f():
            if step >= G1_STEPS: return
            sl = (step >> 1) % G1_NX
            base = V_XRB + (step & 1) + (2 if sl == 2 else 0)
            off = (sl & 1) * G1_XSLOT * (0 if sl == 2 else 1) + mi * 2048
            e("ds_read_b128 a[%d:%d], v%d offset:%d" % (xf(step & 1, mi), xf(step & 1, mi) + 3, base, off))
            g.lg_issue(('x', step, mi))
        return f
    def rd_w(step, nj, q):
        def f():
            if step >= G1_STEPS: return
            r = wf(step & 1, nj) + 2 * q
            e("ds_read_b64_tr_b16 a[%d:%d], v%d offset:%d" % (r, r + 1, V_WRB, (step % G1_NW) * G1_WSLOT + q * 3584 + nj * 32))
            g.lg_issue(('w', step, nj, q))
        return f
    for r in range(ACC, ACC + 112): e("v_mov_b32 v%d, 0" % r)
    g.wait('p0', vm=[('w', 0, 0), ('w', 0, 1)] + [('x', 0, j) for j in range(4)])
    e("s_barrier")
    stamp(g, P, 1)
    for mi in range(4): rd_x(0, mi)()
    for nj in range(7):
        for q in range(2): rd_w(0, nj, q)()

    def step(s):
        b = s & 1
        if s + 1 < G1_STEPS:
            need = [('w', s + 1, 0), ('w', s + 1, 1)] + [('x', (s + 1) >> 1, j) for j in range(4)]
            g.wait(('s', s), vm=need, lg='all')
            e("s_barrier")
        else:
            g.wait(('s', s), lg='all')
        mf = []
        for nj in range(7):
            for mi in range(4):
                a = acc(mi, nj)
                mf.append("v_mfma_f32_16x16x32_bf16 v[%d:%d], a[%d:%d], a[%d:%d], v[%d:%d]" %
                          (a, a + 3, wf(b, nj), wf(b, nj) + 3, xf(b, mi), xf(b, mi) + 3, a, a + 3))
        extra = {}
        reads = [rd_x(s + 1, mi) for mi in range(4)] + [rd_w(s + 1, nj, q) for nj in range(7) for q in range(2)]
        for i, r in enumerate(reads):
            extra.setdefault(P['g1_rd0'] + i, []).append(r)
        dp = P['g1_dma']
        extra.setdefault(dp[0], []).append(dma_w2(s + 4))
        if s & 1:
            T = (s - 1) >> 1
            extra.setdefault(dp[1], []).append(dma_x(T + 3, 0))
            extra.setdefault(dp[2], []).append(dma_x(T + 3, 1))
        else:
            T = (s - 2) >> 1
            extra.setdefault(dp[1], []).append(dma_x(T + 3, 2))
            extra.setdefault(dp[2], []).append(dma_x(T + 3, 3))
        if PF:
            if s == 0:
                for G in range(1, PFD + 1): extra.setdefault(24, []).append(prefetch(G))
            elif s % 4 == 0:
                extra.setdefault(24, []).append(prefetch(s // 4 + PFD))
        if P.get('wrel') and s == P.get('wrel_step', 28):
            extra.setdefault(dp[1], []).append(wrel_load)
        interleave(g, mf, extra)
    for s in range(G1_STEPS): step(s)
    stamp(g, P, 2)
    e("s_waitcnt vmcnt(0) lgkmcnt(0)")
    if P.get('wrel'):
        wrel_store()
    e("s_barrier")
    e("s_mul_i32 s40, s26, 14336")
    e("v_lshlrev_b32 v%d, 4, v%d" % (V_T1, V_LANE))
    e("v_add_u32 v%d, s40, v%d" % (V_T2, V_T1))
    e("s_xor_b32 s41, s26, 4")
    e("s_mul_i32 s41, s41, 14336")
    e("v_add_u32 v%d, s41, v%d" % (V_T3, V_T1))
    e("s_nop 7"); e("s_nop 7")
    e("s_cmp_eq_u32 s28, 0")
    e("s_cbranch_scc0 G1_EP1")
    def ep(mat):
        own = [2 * mat, 2 * mat + 1]; snd = [2 - 2 * mat, 3 - 2 * mat]
        for k, mi in enumerate(snd):
            for nj in range(7):
                a = acc(mi, nj)
                e("ds_write_b128 v%d, v[%d:%d] offset:%d" % (V_T2, a, a + 3, (k * 7 + nj) * 1024))
        e("s_waitcnt lgkmcnt(0)")
        e("s_barrier")
        for k, mi in enumerate(snd):
            for nj in range(7):
                a = acc(mi, nj)
                e("ds_read_b128 v[%d:%d], v%d offset:%d" % (a, a + 3, V_T3, (k * 7 + nj) * 1024))
        C1, C0, ONE = T0, T0 + 2, T0 + 4
        c = -2.0 * 0.7978845608028654 * 1.4426950408889634
        import struct
        def f2u(x): return struct.unpack("<I", struct.pack("<f", x))[0]
        for r in (C1, C1 + 1): e("v_mov_b32 v%d, 0x%08x" % (r, f2u(c * 0.044715)))
        for r in (C0, C0 + 1): e("v_mov_b32 v%d, 0x%08x" % (r, f2u(c)))
        for r in (ONE, ONE + 1): e("v_mov_b32 v%d, 1.0" % r)
        e("s_waitcnt lgkmcnt(0)")
        TT = T0 + 8
        pairs = []
        for k in range(2):
            for nj in range(7):
                for hf in range(2):
                    o = acc(own[k], nj) + 2 * hf; r = acc(snd[k], nj) + 2 * hf
                    gg, uu = (o, r) if mat == 0 else (r, o)
                    pairs.append((gg, uu, k, nj, hf))
        for b0 in range(0, len(pairs), 4):
            grp = pairs[b0:b0 + 4]
            for i, (gg, uu, k, nj, hf) in enumerate(grp):
                t = TT + 2 * i
                e("v_pk_mul_f32 v[%d:%d], v[%d:%d], v[%d:%d]" % (t, t + 1, gg, gg + 1, gg, gg + 1))
            for i, (gg, uu, k, nj, hf) in enumerate(grp):
                t = TT + 2 * i
                e("v_pk_fma_f32 v[%d:%d], v[%d:%d], v[%d:%d], v[%d:%d]" % (t, t + 1, t, t + 1, C1, C1 + 1, C0, C0 + 1))
            for i, (gg, uu, k, nj, hf) in enumerate(grp):
                t = TT + 2 * i
                e("v_pk_mul_f32 v[%d:%d], v[%d:%d], v[%d:%d]" % (t, t + 1, t, t + 1, gg, gg + 1))
            for i in range(len(grp)):
                t = TT + 2 * i
                e("v_exp_f32 v%d, v%d" % (t, t)); e("v_exp_f32 v%d, v%d" % (t + 1, t + 1))
            for i, (gg, uu, k, nj, hf) in enumerate(grp):
                e("v_pk_mul_f32 v[%d:%d], v[%d:%d], v[%d:%d]" % (gg, gg + 1, gg, gg + 1, uu, uu + 1))
            for i in range(len(grp)):
                t = TT + 2 * i
                e("v_pk_add_f32 v[%d:%d], v[%d:%d], v[%d:%d]" % (t, t + 1, t, t + 1, ONE, ONE + 1))
            for i in range(len(grp)):
                t = TT + 2 * i
                e("v_rcp_f32 v%d, v%d" % (t, t)); e("v_rcp_f32 v%d, v%d" % (t + 1, t + 1))
            e("s_nop 0")
            for i, (gg, uu, k, nj, hf) in enumerate(grp):
                t = TT + 2 * i
                e("v_pk_mul_f32 v[%d:%d], v[%d:%d], v[%d:%d]" % (t, t + 1, t, t + 1, gg, gg + 1))
            for i, (gg, uu, k, nj, hf) in enumerate(grp):
                t = TT + 2 * i
                d = acc(own[k], 0) + nj * 2 + hf
                e("v_cvt_pk_bf16_f32 v%d, v%d, v%d" % (d, t, t + 1))
        e("s_lshl_b32 s40, s24, 4")
        e("s_lshl_b32 s41, s27, 2")
        e("s_add_u32 s40, s40, s41")
        e("s_add_u32 s40, s40, %d" % own[0])
        e("s_mul_i32 s40, s40, 114688")
        e("s_mul_i32 s41, s25, 7")
        e("s_lshr_b32 s42, s41, 1")
        e("s_lshl_b32 s42, s42, 10")
        e("s_add_u32 s40, s40, s42")
        e("s_add_u32 s43, s40, 114688")
        e("s_and_b32 s41, s25, 1")
        e("s_cmp_eq_u32 s41, 0")
        e("s_cbranch_scc0 G1_ODD%d" % mat)
        for k, so in ((0, "s40"), (1, "s43")):
            d = acc(own[k], 0)
            for pi in range(3):
                e("buffer_store_dwordx4 v[%d:%d], v%d, s[20:23], %s offen offset:%d" % (d + 4 * pi, d + 4 * pi + 3, V_T1, so, pi * 1024))
            e("buffer_store_dwordx2 v[%d:%d], v%d, s[20:23], %s offen offset:%d" % (d + 12, d + 13, V_T1, so, 3 * 1024))
        e("s_branch G1_END")
        g.label("G1_ODD%d" % mat)
        for k, so in ((0, "s40"), (1, "s43")):
            d = acc(own[k], 0)
            e("buffer_store_dwordx2 v[%d:%d], v%d, s[20:23], %s offen offset:8" % (d, d + 1, V_T1, so))
            for pi in range(3):
                e("buffer_store_dwordx4 v[%d:%d], v%d, s[20:23], %s offen offset:%d" % (d + 2 + 4 * pi, d + 2 + 4 * pi + 3, V_T1, so, (pi + 1) * 1024))
        e("s_branch G1_END")
    ep(0)
    g.label("G1_EP1")
    ep(1)
    g.label("G1_END")
    stamp(g, P, 3)
    stamp_dump(g, P, ("s20", "s21"), 6)
    g.label("G1_EXIT")
    e("s_endpgm")

G2_SLOT = 32768
G2_STAGES = 14
G2_US = 56

def gemm2(g, P):
    e = g.e
    G2_RING = P.get('g2_ring', 8)
    G2_NSLOT = P.get('g2_nslot', 4)
    WF0 = G2_RING * 8
    ACC = 16
    def acc(mi, nj): return ACC + (mi * 4 + nj) * 4
    def hf(u, mi): return (u % G2_RING) * 8 + mi * 4
    def wf(b, nj): return WF0 + b * 16 + nj * 4
    V_LANE, V_WVO, V_HVO, V_T1, V_T2, V_T3 = 1, 2, 3, 5, 6, 7
    V_RB = 48
    NSP = (G2_NSLOT + 1) // 2
    g.label("gemm2_kernel")
    e("s_cmp_ge_u32 s2, 256")
    e("s_cbranch_scc1 G2_EXIT")
    stamp(g, P, 0)
    e("s_load_dwordx2 s[6:7], s[0:1], 32")
    e("s_load_dwordx2 s[10:11], s[0:1], 48")
    e("v_lshrrev_b32 v%d, 6, v0" % V_T1)
    e("v_and_b32 v%d, 63, v0" % V_LANE)
    e("s_and_b32 s40, s2, 7")
    e("v_readfirstlane_b32 s26, v%d" % V_T1)
    e("s_lshr_b32 s41, s2, 3")
    e("s_and_b32 s42, s40, 3")
    e("s_lshl_b32 s42, s42, 2")
    e("s_and_b32 s43, s41, 3")
    e("s_add_u32 s24, s42, s43")
    e("s_lshr_b32 s42, s40, 2")
    e("s_lshl_b32 s42, s42, 3")
    e("s_lshr_b32 s43, s41, 2")
    e("s_add_u32 s25, s42, s43")
    e("s_and_b32 s27, s26, 3")
    e("s_lshr_b32 s28, s26, 2")
    e("v_lshlrev_b32 v%d, 4, v%d" % (V_WVO, V_LANE))
    e("v_lshlrev_b32 v%d, 4, v%d" % (V_HVO, V_LANE))
    e("v_add_u32 v%d, 114688, v%d" % (V_HVO + 1, V_HVO))
    e("s_lshl_b32 s44, s26, 12")
    e("s_mul_i32 s41, s25, 458752")
    e("s_add_u32 s29, s44, s41")
    e("s_lshl_b32 s40, s24, 3")
    e("s_lshl_b32 s41, s27, 1")
    e("s_add_u32 s40, s40, s41")
    e("s_mul_i32 s40, s40, 114688")
    e("s_lshl_b32 s41, s28, 10")
    e("s_add_u32 s30, s40, s41")
    e("s_mov_b32 s14, %d" % (0 if (P.get('noload') or P.get('noload_a')) else F * D * 2)); e("s_mov_b32 s15, 0x00020000")
    e("s_mov_b32 s18, %d" % (0 if (P.get('noload') or P.get('noload_b')) else H_BYTES)); e("s_mov_b32 s19, 0x00020000")
    e("s_waitcnt lgkmcnt(0)")
    e("s_mov_b32 s16, s10"); e("s_and_b32 s17, s11, 0xffff")
    e("s_add_u32 s12, s16, %d" % WREL_OFF); e("s_addc_u32 s13, s17, 0")

    def dma4(stage):
        def f():
            if stage >= G2_STAGES: return
            e("s_add_u32 m0, s44, %d" % ((stage % G2_NSLOT) * G2_SLOT))
            e("s_add_u32 s40, s29, %d" % (stage * 32768))
            for j in range(4):
                e("buffer_load_dwordx4 v%d, s[12:15], s40 offen offset:%d lds" % (V_WVO, j * 1024))
                g.vm_issue(('d', stage, j))
        return f
    def dma1(stage, j):
        def f():
            if stage >= G2_STAGES: return
            if j == 0:
                e("s_add_u32 s45, s44, %d" % ((stage % G2_NSLOT) * G2_SLOT))
                e("s_add_u32 s41, s29, %d" % (stage * 32768))
            e("s_mov_b32 m0, s45")
            e("s_nop 0")
            e("buffer_load_dwordx4 v%d, s[12:15], s41 offen offset:%d lds" % (V_WVO, j * 1024))
            g.vm_issue(('d', stage, j))
        return f
    def ldh(u, mi):
        def f():
            if u >= G2_US: return
            r = hf(u, mi)
            if mi == 0 and (u & 1) == 0:
                e("s_add_u32 s31, s30, %d" % (u * 2048))
            e("buffer_load_dwordx4 a[%d:%d], v%d, s[16:19], s31 offen offset:%d" % (r, r + 3, V_HVO + mi, (u & 1) * 2048))
            g.vm_issue(('h', u, mi))
        return f
    def rd_w(u, nj, q):
        def f():
            if u >= G2_US: return
            r = wf(u & 1, nj) + 2 * q
            sl = (u >> 2) % G2_NSLOT
            e("ds_read_b64_tr_b16 a[%d:%d], v%d offset:%d" % (r, r + 1, V_RB + (sl >> 1) * 4 + nj, (sl & 1) * G2_SLOT + ((u & 3) * 64 + 16 * q) * 128))
            g.lg_issue(('w', u, nj, q))
        return f
    hq = list(range(G2_RING - 1))
    for st in range(G2_NSLOT):
        dma4(st)()
        take = hq[:4] if st < G2_NSLOT - 1 else hq
        hq = hq[len(take):]
        for u in take:
            for mi in range(2): ldh(u, mi)()
    e("v_lshrrev_b32 v%d, 3, v%d" % (V_T1, V_LANE))
    e("v_and_b32 v%d, 3, v%d" % (V_T1, V_T1))
    e("v_lshlrev_b32 v%d, 1, v%d" % (V_T1, V_T1))
    e("v_lshrrev_b32 v%d, 2, v%d" % (V_T2, V_LANE))
    e("v_lshlrev_b32 v%d, 7, v%d" % (V_T2, V_T2))
    e("v_and_b32 v%d, 3, v%d" % (V_T3, V_LANE))
    e("v_lshl_add_u32 v%d, v%d, 3, v%d" % (V_T2, V_T3, V_T2))
    e("s_lshl_b32 s40, s28, 12")
    e("v_add_u32 v%d, s40, v%d" % (V_T2, V_T2))
    for nj in range(4):
        e("v_xor_b32 v%d, %d, v%d" % (V_T3, 2 * nj, V_T1))
        e("v_lshl_add_u32 v%d, v%d, 4, v%d" % (V_RB + nj, V_T3, V_T2))
        for sp in range(1, NSP):
            e("v_add_u32 v%d, %d, v%d" % (V_RB + sp * 4 + nj, sp * 65536, V_RB + nj))
    e("s_mov_b32 s20, s6"); e("s_and_b32 s21, s7, 0xffff"); e("s_mov_b32 s22, %d" % (S * D * 2)); e("s_mov_b32 s23, 0x00020000")
    for r in range(ACC, ACC + 32): e("v_mov_b32 v%d, 0" % r)
    g.wait('p0', vm=[('d', 0, j) for j in range(4)])
    e("s_barrier")
    stamp(g, P, 1)
    for nj in range(4):
        for q in range(2): rd_w(0, nj, q)()

    def wstep(u):
        b = u & 1
        last = (u & 3) == 3
        t = u >> 2
        if last and t + 1 < G2_STAGES:
            g.wait(('b', u), vm=[('d', t + 1, j) for j in range(4)] + [('h', u, 0), ('h', u, 1)], lg='all')
            e("s_barrier")
        else:
            g.wait(('w', u), vm=[('h', u, 0), ('h', u, 1)], lg=[('w', u, nj, q) for nj in range(4) for q in range(2)])
        mf = []
        for nj in range(4):
            for mi in range(2):
                a = acc(mi, nj)
                mf.append("v_mfma_f32_16x16x32_bf16 v[%d:%d], a[%d:%d], a[%d:%d], v[%d:%d]" %
                          (a, a + 3, wf(b, nj), wf(b, nj) + 3, hf(u, mi), hf(u, mi) + 3, a, a + 3))
        extra = {}
        reads = [rd_w(u + 1, nj, q) for nj in range(4) for q in range(2)]
        for i, r in enumerate(reads): extra.setdefault(i // P.get('g2_rdper', 1), []).append(r)
        extra.setdefault(P.get('g2_h0', 1), []).append(ldh(u + G2_RING - 1, 0))
        extra.setdefault(P.get('g2_h1', 5), []).append(ldh(u + G2_RING - 1, 1))
        if P.get('g2_spread'):
            tt = (u + 1) >> 2
            j = (u + 1) & 3
            if u >= 3: extra.setdefault(P.get('g2_dpos', 7), []).append(dma1(tt + G2_NSLOT - 2 + 1 - 1 + 1 - 1, j) if False else dma1(tt - 1 + G2_NSLOT, j))
        elif last:
            extra.setdefault(P.get('g2_dpos', 7), []).append(dma4(t + G2_NSLOT))
        interleave(g, mf, extra)
    for u in range(G2_US): wstep(u)
    stamp(g, P, 2)
    e("s_waitcnt vmcnt(0) lgkmcnt(0)")
    e("s_barrier")
    e("s_lshl_b32 s40, s26, 12")
    e("v_lshlrev_b32 v%d, 4, v%d" % (V_T1, V_LANE))
    e("v_add_u32 v%d, s40, v%d" % (V_T2, V_T1))
    e("s_xor_b32 s41, s26, 4")
    e("s_lshl_b32 s41, s41, 12")
    e("v_add_u32 v%d, s41, v%d" % (V_T3, V_T1))
    e("s_nop 7"); e("s_nop 7")
    e("s_cmp_eq_u32 s28, 0")
    e("s_cbranch_scc0 G2_EP1")
    def ep(kh):
        own, snd = kh, 1 - kh
        for nj in range(4):
            a = acc(snd, nj)
            e("ds_write_b128 v%d, v[%d:%d] offset:%d" % (V_T2, a, a + 3, nj * 1024))
        e("s_waitcnt lgkmcnt(0)")
        e("s_barrier")
        for nj in range(4):
            a = acc(snd, nj)
            e("ds_read_b128 v[%d:%d], v%d offset:%d" % (a, a + 3, V_T3, nj * 1024))
        e("v_and_b32 v%d, 15, v%d" % (V_T1, V_LANE))
        e("v_lshrrev_b32 v%d, 4, v%d" % (V_T2, V_LANE))
        e("v_lshlrev_b32 v%d, 3, v%d" % (V_T2, V_T2))
        e("v_lshl_add_u32 v%d, v%d, 11, v%d" % (V_T1, V_T1, V_T2))
        e("s_lshl_b32 s40, s24, 7")
        e("s_lshl_b32 s41, s27, 5")
        e("s_add_u32 s40, s40, s41")
        e("s_add_u32 s40, s40, %d" % (16 * own))
        e("s_lshl_b32 s40, s40, 11")
        e("s_lshl_b32 s41, s25, 7")
        e("s_add_u32 s40, s40, s41")
        e("s_waitcnt lgkmcnt(0)")
        for nj in range(4):
            a = acc(own, nj); r = acc(snd, nj)
            e("v_pk_add_f32 v[%d:%d], v[%d:%d], v[%d:%d]" % (a, a + 1, a, a + 1, r, r + 1))
            e("v_pk_add_f32 v[%d:%d], v[%d:%d], v[%d:%d]" % (a + 2, a + 3, a + 2, a + 3, r + 2, r + 3))
        for nj in range(4):
            a = acc(own, nj)
            e("v_cvt_pk_bf16_f32 v%d, v%d, v%d" % (a, a, a + 1))
            e("v_cvt_pk_bf16_f32 v%d, v%d, v%d" % (a + 1, a + 2, a + 3))
        for nj in range(4):
            a = acc(own, nj)
            e("buffer_store_dwordx2 v[%d:%d], v%d, s[20:23], s40 offen offset:%d" % (a, a + 1, V_T1, nj * 32))
        e("s_branch G2_END")
    ep(0)
    g.label("G2_EP1")
    ep(1)
    g.label("G2_END")
    stamp(g, P, 3)
    if P.get('stamps'): e("s_add_u32 s16, s16, 0x1000000"); e("s_addc_u32 s17, s17, 0")
    stamp_dump(g, P, ("s16", "s17"), 6)
    g.label("G2_EXIT")
    e("s_endpgm")

HEADER = """; Kernarg layout for this problem (56 bytes, ptrs only, base s[0:1]):
; @launch kernel=gemm1_kernel grid=(256,1,1) block=(512,1,1) lds=%d
; @launch kernel=gemm2_kernel grid=(256,1,1) block=(512,1,1) lds=%d
.amdgcn_target "amdgcn-amd-amdhsa--gfx950"
.text
"""
def kd(name, nv, acc_off, ns=64):
    return """.amdhsa_kernel %s
  .amdhsa_next_free_vgpr %d
  .amdhsa_next_free_sgpr %d
  .amdhsa_accum_offset %d
  .amdhsa_group_segment_fixed_size 0
  .amdhsa_kernarg_size 56
  .amdhsa_user_sgpr_count 2
  .amdhsa_user_sgpr_kernarg_segment_ptr 1
  .amdhsa_system_sgpr_workgroup_id_x 1
.end_amdhsa_kernel
""" % (name, nv, ns, acc_off)

def build(P):
    out = [HEADER % (G1_LDS, G2_SLOT * P.get('g2_nslot', 4))]
    for name, fn in (("gemm1_kernel", gemm1), ("gemm2_kernel", gemm2)):
        g = Sim()
        g.nomfma = P.get('nomfma', False)
        g.drop = P.get('drop', ())
        fn(g, P)
        g.emit = True
        fn(g, P)
        out.append(".globl %s\n.p2align 8\n.type %s,@function\n" % (name, name) + "\n".join(g.lines) + "\n")
    out.append('.section .rodata,"a"\n.p2align 6\n' + kd("gemm1_kernel", 256, 168, 80) + ".p2align 6\n" + kd("gemm2_kernel", 64 + P.get("g2_ring", 8) * 8 + 32, 64, 80))
    return "".join(out)

DEFAULT = dict(g1_rd0=0, g1_dma=[3, 12, 20], g2_rdper=2, g2_h0=4, g2_h1=6, g2_dma=[4,5,6,7], wrel=1)
if __name__ == "__main__":
    P = dict(DEFAULT)
    for a in sys.argv[2:]:
        k, v = a.split("=")
        P[k] = eval(v)
    txt = build(P)
    path = sys.argv[1] if len(sys.argv) > 1 else "standalone__geglu_ffn__prompt.s"
    open(path, "w").write(txt)
    print("wrote", path, len(txt))
```

```python
import sys

S, D, F = 2048, 1024, 3584
WREL_OFF = 0x1000000
H_BYTES = S * F * 2

class Sim:
    def __init__(self):
        self.emit = False
        self.lines = []
        self.vm = []; self.lg = []
        self.vmN = {}; self.lgN = {}
    def e(self, s):
        if self.emit:
            for sub in getattr(self, 'drop', ()):
                if sub in s: return
            self.lines.append("  " + s)
    def label(self, s):
        if self.emit: self.lines.append(s + ":")
    def vm_issue(self, tag):
        if not self.emit: self.vm.append(tag)
    def lg_issue(self, tag):
        if not self.emit: self.lg.append(tag)
    def _n(self, q, tags):
        idx = -1
        for t in tags:
            for i in range(len(q) - 1, -1, -1):
                if q[i] == t:
                    idx = max(idx, i); break
            else:
                raise KeyError(("tag never issued", t))
        return len(q) - 1 - idx
    def wait(self, site, vm=None, lg=None):
        if not self.emit:
            if vm is not None:
                n = 0 if vm == 'all' else self._n(self.vm, vm)
                self.vmN[site] = min(self.vmN.get(site, 1 << 30), n)
            if lg is not None:
                n = 0 if lg == 'all' else self._n(self.lg, lg)
                self.lgN[site] = min(self.lgN.get(site, 1 << 30), n)
            return
        parts = []
        if vm is not None and self.vmN[site] <= 63: parts.append("vmcnt(%d)" % self.vmN[site])
        if lg is not None: parts.append("lgkmcnt(%d)" % min(self.lgN[site], 15))
        if parts: self.e("s_waitcnt " + " ".join(parts))

def stamp(g, P, idx):
    if P.get('stamps'):
        g.e("s_memtime s[%d:%d]" % (66 + 2 * idx, 67 + 2 * idx))
        if idx == 0: g.e("s_memrealtime s[74:75]")
        if idx == 3: g.e("s_memrealtime s[76:77]")
def stamp_dump(g, P, wsreg, n):
    if not P.get('stamps'): return
    e = g.e
    e("s_waitcnt lgkmcnt(0) vmcnt(0)")
    e("s_add_u32 s60, %s, 0x8000000" % wsreg[0]); e("s_addc_u32 s61, %s, 0" % wsreg[1])
    e("s_mov_b32 s62, 0x1000000"); e("s_mov_b32 s63, 0x00020000")
    e("s_lshl_b32 s64, s2, 3"); e("s_add_u32 s64, s64, s26"); e("s_lshl_b32 s64, s64, 7")
    e("v_mov_b32 v11, 0")
    for i in range(n):
        e("v_mov_b32 v12, s%d" % (66 + 2 * i)); e("v_mov_b32 v13, s%d" % (67 + 2 * i))
        e("buffer_store_dwordx2 v[12:13], v11, s[60:63], s64 offen offset:%d" % (8 * i))
    e("s_waitcnt vmcnt(0)")

def interleave(g, main, extra):
    for f in extra.get(-1, []):
        f()
    for i, m in enumerate(main):
        if not getattr(g, 'nomfma', False): g.e(m)
        for f in extra.get(i, []):
            f()

G1_XSLOT = 32768; G1_NX = 3
G1_WSLOT = 14336; G1_NW = 4
G1_XB = G1_WSLOT * G1_NW
G1_LDS = G1_XB + G1_XSLOT * G1_NX
G1_STEPS = 32

def gemm1(g, P):
    ACC = 16
    def acc(mi, nj): return ACC + (mi * 7 + nj) * 4
    T0 = 128
    CPY = 152
    def xf(b, mi): return b * 44 + mi * 4
    def wf(b, nj): return b * 44 + 16 + nj * 4
    V_LANE, V_XVO, V_WVO, V_XRB, V_WRB, V_T1, V_T2, V_T3, V_PFX, V_PFW = 1, 2, 6, 7, 11, 12, 13, 14, 15, 0
    e = g.e
    g.label("gemm1_kernel")
    e("s_cmp_ge_u32 s2, 256")
    e("s_cbranch_scc1 G1_EXIT")
    stamp(g, P, 0)
    e("s_load_dwordx4 s[4:7], s[0:1], 0")
    e("s_load_dwordx4 s[8:11], s[0:1], 16")
    e("s_load_dwordx2 s[48:49], s[0:1], 48")
    e("v_lshrrev_b32 v%d, 6, v0" % V_T1)
    e("v_and_b32 v%d, 63, v0" % V_LANE)
    e("s_and_b32 s40, s2, 7")
    e("v_readfirstlane_b32 s26, v%d" % V_T1)
    e("s_lshr_b32 s41, s2, 3")
    e("s_and_b32 s42, s40, 1")
    e("s_lshl_b32 s42, s42, 2")
    e("s_and_b32 s43, s41, 3")
    e("s_add_u32 s24, s42, s43")
    e("s_lshr_b32 s42, s40, 1")
    e("s_lshl_b32 s42, s42, 3")
    e("s_lshr_b32 s43, s41, 2")
    e("s_add_u32 s25, s42, s43")
    if P.get('badmap'):
        e("s_and_b32 s24, s2, 7"); e("s_lshr_b32 s25, s2, 3")
    e("s_and_b32 s27, s26, 3")
    e("s_lshr_b32 s28, s26, 2")
    e("v_mul_u32_u24 v%d, 37, v%d" % (V_T1, V_LANE))
    e("v_lshrrev_b32 v%d, 9, v%d" % (V_T1, V_T1))
    e("v_mul_u32_u24 v%d, 14, v%d" % (V_T2, V_T1))
    e("v_sub_u32 v%d, v%d, v%d" % (V_T2, V_LANE, V_T2))
    e("v_mul_u32_u24 v%d, 7168, v%d" % (V_T1, V_T1))
    e("v_lshl_add_u32 v%d, v%d, 4, v%d" % (V_WVO, V_T2, V_T1))
    e("v_lshrrev_b32 v%d, 3, v%d" % (V_T1, V_LANE))
    e("v_lshrrev_b32 v%d, 4, v%d" % (V_T2, V_LANE))
    e("v_and_b32 v%d, 7, v%d" % (V_T3, V_LANE))
    e("v_xor_b32 v%d, v%d, v%d" % (V_T2, V_T2, V_T3))
    e("v_lshlrev_b32 v%d, 4, v%d" % (V_T2, V_T2))
    e("v_lshl_add_u32 v%d, v%d, 11, v%d" % (V_XVO, V_T1, V_T2))
    e("v_xor_b32 v%d, 64, v%d" % (V_T1, V_XVO))
    e("v_add_u32 v%d, 16384, v%d" % (V_XVO + 1, V_T1))
    e("v_add_u32 v%d, 32768, v%d" % (V_XVO + 2, V_XVO))
    e("v_add_u32 v%d, 49152, v%d" % (V_XVO + 3, V_T1))
    e("s_lshl_b32 s40, s24, 19")
    e("s_lshl_b32 s41, s26, 16")
    e("s_add_u32 s29, s40, s41")
    e("s_and_b32 s40, s27, 1")
    e("s_lshl_b32 s40, s40, 4")
    e("s_lshr_b32 s41, s27, 1")
    e("s_lshl_b32 s41, s41, 2")
    e("s_add_u32 s40, s40, s41")
    e("s_mul_i32 s40, s40, 7168")
    e("s_mul_i32 s41, s25, 224")
    e("s_add_u32 s31, s40, s41")
    e("s_lshl_b32 s44, s26, 12")
    e("s_add_u32 s44, s44, %d" % G1_XB)
    e("s_mul_i32 s45, s28, 7168")
    e("s_mul_i32 s40, s27, 1792")
    e("s_add_u32 s45, s45, s40")
    e("s_mov_b32 s36, -1"); e("s_mov_b32 s37, 0x00ffffff")
    e("s_mov_b32 s14, %d" % (0 if (P.get('noload') or P.get('noload_a')) else S * D * 2)); e("s_mov_b32 s15, 0x00020000")
    e("s_mov_b32 s18, %d" % (0 if (P.get('noload') or P.get('noload_b')) else D * F * 2)); e("s_mov_b32 s19, 0x00020000")
    e("s_cmp_eq_u32 s28, 0")
    e("s_waitcnt lgkmcnt(0)")
    e("s_cselect_b32 s16, s6, s8"); e("s_cselect_b32 s17, s7, s9"); e("s_and_b32 s17, s17, 0xffff")
    e("s_mov_b32 s12, s4"); e("s_and_b32 s13, s5, 0xffff")

    ROT = P.get('g1_rot', 0)
    if ROT:
        e("s_and_b32 s40, s2, 7")
        e("s_mul_i32 s40, s40, %d" % ROT)
        e("s_and_b32 s40, s40, 15")
        e("s_sub_u32 s33, 16, s40")
        e("s_lshl_b32 s41, s40, 7")
        e("s_add_u32 s29, s29, s41")
        e("s_sub_u32 s30, s29, 2048")
        e("s_mul_i32 s41, s40, %d" % (64 * 7168))
        e("s_add_u32 s31, s31, s41")
        e("s_sub_u32 s32, s31, %d" % (1024 * 7168))
    def dma_x(tile, j):
        def f():
            if tile >= 16: return
            e("s_add_u32 m0, s44, %d" % (((tile % G1_NX) * G1_XSLOT + j * 1024 - tile * 128) & 0xffffffff))
            if ROT:
                e("s_cmp_gt_u32 s33, %d" % tile)
                e("s_cselect_b32 s34, s29, s30")
            else:
                e("s_nop 0")
            e("buffer_load_dwordx4 v%d, s[12:15], %s offen offset:%d lds" % (V_XVO + j, "s34" if ROT else "s29", tile * 128))
            g.vm_issue(('x', tile, j))
        return f
    def dma_w2(stage):
        def f():
            if stage >= G1_STEPS: return
            e("s_mov_b64 exec, s[36:37]")
            if ROT:
                e("s_cmp_gt_u32 s33, %d" % (stage >> 1))
                e("s_cselect_b32 s35, s31, s32")
            for j in range(2):
                e("s_add_u32 m0, s45, %d" % ((stage % G1_NW) * G1_WSLOT + j * 896))
                e("s_add_u32 s40, %s, %d" % ("s35" if ROT else "s31", stage * 32 * 7168 + j * 8 * 7168))
                e("buffer_load_dwordx4 v%d, s[16:19], s40 offen lds" % V_WVO)
                g.vm_issue(('w', stage, j))
            e("s_mov_b64 exec, -1")
        return f
    dma_w2(0)()
    for j in range(4): dma_x(0, j)()
    dma_w2(1)()
    late = [dma_w2(2)] + [dma_x(1, j) for j in range(4)] + [dma_w2(3)] + [dma_x(2, j) for j in range(2)]
    NL = P.get('g1_late', 0)
    for f in late[:len(late) - NL]: f()
    late = late[len(late) - NL:]
    e("v_and_b32 v%d, 15, v%d" % (V_T1, V_LANE))
    e("v_lshrrev_b32 v%d, 1, v%d" % (V_T2, V_T1))
    e("v_lshrrev_b32 v%d, 4, v%d" % (V_T3, V_LANE))
    e("v_xor_b32 v%d, v%d, v%d" % (V_T2, V_T2, V_T3))
    e("v_lshlrev_b32 v%d, 4, v%d" % (V_T2, V_T2))
    e("v_lshl_add_u32 v%d, v%d, 7, v%d" % (V_XRB, V_T1, V_T2))
    e("s_lshl_b32 s40, s27, 13")
    e("s_add_u32 s40, s40, %d" % G1_XB)
    e("v_add_u32 v%d, s40, v%d" % (V_XRB, V_XRB))
    e("v_xor_b32 v%d, 64, v%d" % (V_XRB + 1, V_XRB))
    e("v_add_u32 v%d, 0x10000, v%d" % (V_XRB + 2, V_XRB))
    e("v_add_u32 v%d, 0x10000, v%d" % (V_XRB + 3, V_XRB + 1))
    e("v_lshrrev_b32 v%d, 2, v%d" % (V_T1, V_LANE))
    e("v_mul_u32_u24 v%d, 224, v%d" % (V_T1, V_T1))
    e("v_and_b32 v%d, 3, v%d" % (V_T2, V_LANE))
    e("v_lshl_add_u32 v%d, v%d, 3, v%d" % (V_WRB, V_T2, V_T1))
    e("s_mul_i32 s40, s28, 7168")
    e("v_add_u32 v%d, s40, v%d" % (V_WRB, V_WRB))
    e("s_mov_b32 s20, s48"); e("s_and_b32 s21, s49, 0xffff"); e("s_mov_b32 s22, %d" % H_BYTES); e("s_mov_b32 s23, 0x00020000")
    if P.get('wrel'):
        e("v_lshlrev_b32 v%d, 4, v%d" % (V_PFX, V_LANE))
        e("s_mul_i32 s62, s2, 28672")
        e("s_lshl_b32 s40, s26, 12")
        e("s_add_u32 s62, s62, s40")
        e("s_mov_b32 s48, s10"); e("s_and_b32 s49, s11, 0xffff"); e("s_mov_b32 s50, %d" % (F * D * 2)); e("s_mov_b32 s51, 0x00020000")
    def wrel_load():
        for j in range(4):
            e("buffer_load_dwordx4 v[%d:%d], v%d, s[48:51], s62 offen offset:%d" % (CPY + 4 * j, CPY + 4 * j + 3, V_PFX, 1024 * j))
            g.vm_issue(('cp', j))
    def wrel_store():
        e("s_add_u32 s84, s20, %d" % WREL_OFF); e("s_addc_u32 s85, s21, 0"); e("s_mov_b32 s86, %d" % (F * D * 2)); e("s_mov_b32 s87, 0x00020000")
        e("v_lshrrev_b32 v%d, 3, v%d" % (V_T1, V_LANE))
        e("s_mov_b32 s40, 458752")
        e("v_mul_lo_u32 v%d, v%d, s40" % (V_T1, V_T1))
        e("v_and_b32 v%d, 7, v%d" % (V_T2, V_LANE))
        e("s_mul_i32 s41, s2, 14")
        for j in range(4):
            e("s_lshl_b32 s42, s26, 1")
            e("s_add_u32 s42, s42, %d" % (j >> 1))
            e("s_add_u32 s43, s41, s42")
            e("s_lshr_b32 s40, s43, 1"); e("s_and_b32 s40, s40, 3"); e("s_lshl_b32 s40, s40, 1")
            e("v_xor_b32 v%d, s40, v%d" % (V_T3, V_T2))
            e("v_lshl_add_u32 v%d, v%d, 4, v%d" % (V_PFW, V_T3, V_T1))
            e("s_lshl_b32 s43, s43, 7")
            if j & 1: e("s_add_u32 s43, s43, %d" % (8 * 458752))
            e("s_cmp_lt_u32 s42, 14")
            e("s_cselect_b32 s43, s43, 0x7fff0000")
            e("buffer_store_dwordx4 v[%d:%d], v%d, s[84:87], s43 offen" % (CPY + 4 * j, CPY + 4 * j + 3, V_PFW))
            g.vm_issue(('cs', j))
    PF = P.get('g1_pf', 0); PFD = P.get('g1_pfd', 3)
    V_PX, V_PW, V_DUM = 144, 145, 146
    if PF:
        e("s_mov_b32 s52, s6"); e("s_and_b32 s53, s7, 0xffff"); e("s_mov_b32 s54, %d" % (D * F * 2)); e("s_mov_b32 s55, 0x00020000")
        e("s_mov_b32 s56, s8"); e("s_and_b32 s57, s9, 0xffff"); e("s_mov_b32 s58, %d" % (D * F * 2)); e("s_mov_b32 s59, 0x00020000")
        e("v_and_b32 v%d, 31, v%d" % (V_T1, V_LANE))
        e("v_lshrrev_b32 v%d, 5, v%d" % (V_T2, V_LANE))
        e("v_lshlrev_b32 v%d, 7, v%d" % (V_T2, V_T2))
        e("v_lshl_add_u32 v%d, v%d, 11, v%d" % (V_PX, V_T1, V_T2))
        e("v_mul_u32_u24 v%d, 37, v%d" % (V_T1, V_LANE))
        e("v_lshrrev_b32 v%d, 9, v%d" % (V_T1, V_T1))
        e("v_mul_u32_u24 v%d, 14, v%d" % (V_T2, V_T1))
        e("v_sub_u32 v%d, v%d, v%d" % (V_T2, V_LANE, V_T2))
        e("v_mul_u32_u24 v%d, 7168, v%d" % (V_T1, V_T1))
        e("v_lshl_add_u32 v%d, v%d, 7, v%d" % (V_PW, V_T2, V_T1))
        e("s_and_b32 s40, s2, 1")
        e("s_lshl_b32 s40, s40, 10")
        e("s_lshr_b32 s41, s2, 3")
        e("s_lshl_b32 s42, s41, 5")
        e("s_add_u32 s40, s40, s42")
        e("s_lshl_b32 s60, s40, 11")
        e("s_and_b32 s40, s2, 7")
        e("s_lshr_b32 s40, s40, 1")
        e("s_mul_i32 s40, s40, 1792")
        e("s_mul_i32 s42, s41, %d" % (4 * 7168))
        e("s_add_u32 s61, s40, s42")
    def prefetch(G):
        def f():
            if G >= 8: return
            e("s_cmp_eq_u32 s26, %d" % (G & 7))
            e("s_cbranch_scc0 G1_PF%d" % G)
            e("s_add_u32 s41, s61, %d" % (G * 128 * 7168))
            e("buffer_load_dword v%d, v%d, s[12:15], s60 offen offset:%d" % (V_DUM, V_PX, G * 256))
            e("buffer_load_dword v%d, v%d, s[52:55], s41 offen" % (V_DUM, V_PW))
            e("buffer_load_dword v%d, v%d, s[56:59], s41 offen" % (V_DUM, V_PW))
            g.label("G1_PF%d" % G)
        return f
    def rd_x(step, mi):
        def f():
            if step >= G1_STEPS: return
            sl = (step >> 1) % G1_NX
            base = V_XRB + (step & 1) + (2 if sl == 2 else 0)
            off = (sl & 1) * G1_XSLOT * (0 if sl == 2 else 1) + mi * 2048
            e("ds_read_b128 a[%d:%d], v%d offset:%d" % (xf(step & 1, mi), xf(step & 1, mi) + 3, base, off))
            g.lg_issue(('x', step, mi))
        return f
    def rd_w(step, nj, q):
        def f():
            if step >= G1_STEPS: return
            r = wf(step & 1, nj) + 2 * q
            e("ds_read_b64_tr_b16 a[%d:%d], v%d offset:%d" % (r, r + 1, V_WRB, (step % G1_NW) * G1_WSLOT + q * 3584 + nj * 32))
            g.lg_issue(('w', step, nj, q))
        return f
    for r in range(ACC, ACC + 112): e("v_mov_b32 v%d, 0" % r)
    g.wait('p0', vm=[('w', 0, 0), ('w', 0, 1)] + [('x', 0, j) for j in range(4)])
    e("s_barrier")
    stamp(g, P, 1)
    for mi in range(4): rd_x(0, mi)()
    for nj in range(7):
        for q in range(2): rd_w(0, nj, q)()
    for f in late: f()

    def step(s):
        b = s & 1
        if s + 1 < G1_STEPS:
            need = [('w', s + 1, 0), ('w', s + 1, 1)] + [('x', (s + 1) >> 1, j) for j in range(4)]
            g.wait(('s', s), vm=need, lg='all')
            e("s_barrier")
        else:
            g.wait(('s', s), lg='all')
        mf = []
        for nj in range(7):
            for mi in range(4):
                a = acc(mi, nj)
                mf.append("v_mfma_f32_16x16x32_bf16 v[%d:%d], a[%d:%d], a[%d:%d], v[%d:%d]" %
                          (a, a + 3, wf(b, nj), wf(b, nj) + 3, xf(b, mi), xf(b, mi) + 3, a, a + 3))
        extra = {}
        reads = [rd_x(s + 1, mi) for mi in range(4)] + [rd_w(s + 1, nj, q) for nj in range(7) for q in range(2)]
        for i, r in enumerate(reads):
            extra.setdefault(P['g1_rd0'] + i, []).append(r)
        dp = P['g1_dma']
        extra.setdefault(dp[0], []).append(dma_w2(s + 4))
        if s & 1:
            T = (s - 1) >> 1
            extra.setdefault(dp[1], []).append(dma_x(T + 3, 0))
            extra.setdefault(dp[2], []).append(dma_x(T + 3, 1))
        else:
            T = (s - 2) >> 1
            extra.setdefault(dp[1], []).append(dma_x(T + 3, 2))
            extra.setdefault(dp[2], []).append(dma_x(T + 3, 3))
        if PF:
            if s == 0:
                for G in range(1, PFD + 1): extra.setdefault(24, []).append(prefetch(G))
            elif s % 4 == 0:
                extra.setdefault(24, []).append(prefetch(s // 4 + PFD))
        if P.get('wrel') and s == P.get('wrel_step', 26):
            extra.setdefault(dp[1], []).append(wrel_load)
        if P.get('wrel') and s == P.get('wrel_step', 26) + P.get('wrel_gap', 4):
            def ws_():
                g.wait(('cpw',), vm=[('cp', j) for j in range(4)])
                wrel_store()
            extra.setdefault(dp[1], []).append(ws_)
        interleave(g, mf, extra)
    LASTOV = P.get('g1_lastov', 1)
    for s in range(G1_STEPS - (1 if LASTOV else 0)): step(s)
    stamp(g, P, 2)
    e("s_waitcnt vmcnt(0) lgkmcnt(0)")
    if P.get('stamps'): e("s_memtime s[82:83]")
    e("s_barrier")
    e("s_mul_i32 s40, s26, 14336")
    e("v_lshlrev_b32 v%d, 4, v%d" % (V_T1, V_LANE))
    e("v_add_u32 v%d, s40, v%d" % (V_T2, V_T1))
    e("s_xor_b32 s41, s26, 4")
    e("s_mul_i32 s41, s41, 14336")
    e("v_add_u32 v%d, s41, v%d" % (V_T3, V_T1))
    if not LASTOV: e("s_nop 7"); e("s_nop 7")
    e("s_cmp_eq_u32 s28, 0")
    e("s_cbranch_scc0 G1_EP1")
    def ep(mat):
        own = [2 * mat, 2 * mat + 1]; snd = [2 - 2 * mat, 3 - 2 * mat]
        wr = []
        for k, mi in enumerate(snd):
            for nj in range(7):
                a = acc(mi, nj)
                wr.append("ds_write_b128 v%d, v[%d:%d] offset:%d" % (V_T2, a, a + 3, (k * 7 + nj) * 1024))
        if LASTOV:
            b = (G1_STEPS - 1) & 1
            def mfma(mi, nj):
                a = acc(mi, nj)
                return ("v_mfma_f32_16x16x32_bf16 v[%d:%d], a[%d:%d], a[%d:%d], v[%d:%d]" %
                        (a, a + 3, wf(b, nj), wf(b, nj) + 3, xf(b, mi), xf(b, mi) + 3, a, a + 3))
            for mi in snd:
                for nj in range(7): e(mfma(mi, nj))
            rest = [mfma(mi, nj) for mi in own for nj in range(7)]
            for i, m in enumerate(rest):
                e(m)
                if i >= 0: e(wr[i])
            e("s_nop 7")
        else:
            for w in wr: e(w)
        e("s_waitcnt lgkmcnt(0)")
        e("s_barrier")
        if P.get('stamps'): e("s_memtime s[78:79]")
        for k, mi in enumerate(snd):
            for nj in range(7):
                a = acc(mi, nj)
                e("ds_read_b128 v[%d:%d], v%d offset:%d" % (a, a + 3, V_T3, (k * 7 + nj) * 1024))
        C1, C0, ONE = T0, T0 + 2, T0 + 4
        c = -2.0 * 0.7978845608028654 * 1.4426950408889634
        import struct
        def f2u(x): return struct.unpack("<I", struct.pack("<f", x))[0]
        for r in (C1, C1 + 1): e("v_mov_b32 v%d, 0x%08x" % (r, f2u(c * 0.044715)))
        for r in (C0, C0 + 1): e("v_mov_b32 v%d, 0x%08x" % (r, f2u(c)))
        for r in (ONE, ONE + 1): e("v_mov_b32 v%d, 1.0" % r)
        e("s_waitcnt lgkmcnt(0)")
        TT = T0 + 8
        pairs = []
        for k in range(2):
            for nj in range(7):
                for hf in range(2):
                    o = acc(own[k], nj) + 2 * hf; r = acc(snd[k], nj) + 2 * hf
                    gg, uu = (o, r) if mat == 0 else (r, o)
                    pairs.append((gg, uu, k, nj, hf))
        for b0 in range(0, len(pairs), 4):
            grp = pairs[b0:b0 + 4]
            for i, (gg, uu, k, nj, hf) in enumerate(grp):
                t = TT + 2 * i
                e("v_pk_mul_f32 v[%d:%d], v[%d:%d], v[%d:%d]" % (t, t + 1, gg, gg + 1, gg, gg + 1))
            for i, (gg, uu, k, nj, hf) in enumerate(grp):
                t = TT + 2 * i
                e("v_pk_fma_f32 v[%d:%d], v[%d:%d], v[%d:%d], v[%d:%d]" % (t, t + 1, t, t + 1, C1, C1 + 1, C0, C0 + 1))
            for i, (gg, uu, k, nj, hf) in enumerate(grp):
                t = TT + 2 * i
                e("v_pk_mul_f32 v[%d:%d], v[%d:%d], v[%d:%d]" % (t, t + 1, t, t + 1, gg, gg + 1))
            for i in range(len(grp)):
                t = TT + 2 * i
                e("v_exp_f32 v%d, v%d" % (t, t)); e("v_exp_f32 v%d, v%d" % (t + 1, t + 1))
            for i, (gg, uu, k, nj, hf) in enumerate(grp):
                e("v_pk_mul_f32 v[%d:%d], v[%d:%d], v[%d:%d]" % (gg, gg + 1, gg, gg + 1, uu, uu + 1))
            for i in range(len(grp)):
                t = TT + 2 * i
                e("v_pk_add_f32 v[%d:%d], v[%d:%d], v[%d:%d]" % (t, t + 1, t, t + 1, ONE, ONE + 1))
            for i in range(len(grp)):
                t = TT + 2 * i
                e("v_rcp_f32 v%d, v%d" % (t, t)); e("v_rcp_f32 v%d, v%d" % (t + 1, t + 1))
            e("s_nop 0")
            for i, (gg, uu, k, nj, hf) in enumerate(grp):
                t = TT + 2 * i
                e("v_pk_mul_f32 v[%d:%d], v[%d:%d], v[%d:%d]" % (t, t + 1, t, t + 1, gg, gg + 1))
            for i, (gg, uu, k, nj, hf) in enumerate(grp):
                t = TT + 2 * i
                d = acc(own[k], 0) + nj * 2 + hf
                e("v_cvt_pk_bf16_f32 v%d, v%d, v%d" % (d, t, t + 1))
        if P.get('stamps'): e("s_memtime s[80:81]")
        e("s_lshl_b32 s40, s24, 4")
        e("s_lshl_b32 s41, s27, 2")
        e("s_add_u32 s40, s40, s41")
        e("s_add_u32 s40, s40, %d" % own[0])
        e("s_mul_i32 s40, s40, 114688")
        e("s_mul_i32 s41, s25, 7")
        e("s_lshr_b32 s42, s41, 1")
        e("s_lshl_b32 s42, s42, 10")
        e("s_add_u32 s40, s40, s42")
        e("s_add_u32 s43, s40, 114688")
        e("s_and_b32 s41, s25, 1")
        e("s_cmp_eq_u32 s41, 0")
        e("s_cbranch_scc0 G1_ODD%d" % mat)
        for k, so in ((0, "s40"), (1, "s43")):
            d = acc(own[k], 0)
            for pi in range(3):
                e("buffer_store_dwordx4 v[%d:%d], v%d, s[20:23], %s offen offset:%d" % (d + 4 * pi, d + 4 * pi + 3, V_T1, so, pi * 1024))
            e("buffer_store_dwordx2 v[%d:%d], v%d, s[20:23], %s offen offset:%d" % (d + 12, d + 13, V_T1, so, 3 * 1024))
        e("s_branch G1_END")
        g.label("G1_ODD%d" % mat)
        for k, so in ((0, "s40"), (1, "s43")):
            d = acc(own[k], 0)
            e("buffer_store_dwordx2 v[%d:%d], v%d, s[20:23], %s offen offset:8" % (d, d + 1, V_T1, so))
            for pi in range(3):
                e("buffer_store_dwordx4 v[%d:%d], v%d, s[20:23], %s offen offset:%d" % (d + 2 + 4 * pi, d + 2 + 4 * pi + 3, V_T1, so, (pi + 1) * 1024))
        e("s_branch G1_END")
    ep(0)
    g.label("G1_EP1")
    ep(1)
    g.label("G1_END")
    stamp(g, P, 3)
    stamp_dump(g, P, ("s20", "s21"), 9)
    g.label("G1_EXIT")
    e("s_endpgm")

G2_SLOT = 32768
G2_STAGES = 14
G2_US = 56

def gemm2(g, P):
    e = g.e
    G2_RING = P.get('g2_ring', 8)
    G2_NSLOT = P.get('g2_nslot', 4)
    WF0 = G2_RING * 8
    ACC = 16
    def acc(mi, nj): return ACC + (mi * 4 + nj) * 4
    def hf(u, mi): return (u % G2_RING) * 8 + mi * 4
    def wf(b, nj): return WF0 + b * 16 + nj * 4
    V_LANE, V_WVO, V_HVO, V_T1, V_T2, V_T3 = 1, 2, 3, 5, 6, 7
    V_RB = 48
    NSP = (G2_NSLOT + 1) // 2
    g.label("gemm2_kernel")
    e("s_cmp_ge_u32 s2, 256")
    e("s_cbranch_scc1 G2_EXIT")
    stamp(g, P, 0)
    e("s_load_dwordx2 s[6:7], s[0:1], 32")
    e("s_load_dwordx2 s[10:11], s[0:1], 48")
    e("v_lshrrev_b32 v%d, 6, v0" % V_T1)
    e("v_and_b32 v%d, 63, v0" % V_LANE)
    e("s_and_b32 s40, s2, 7")
    e("v_readfirstlane_b32 s26, v%d" % V_T1)
    e("s_lshr_b32 s41, s2, 3")
    e("s_and_b32 s42, s40, 3")
    e("s_lshl_b32 s42, s42, 2")
    e("s_and_b32 s43, s41, 3")
    e("s_add_u32 s24, s42, s43")
    e("s_lshr_b32 s42, s40, 2")
    e("s_lshl_b32 s42, s42, 3")
    e("s_lshr_b32 s43, s41, 2")
    e("s_add_u32 s25, s42, s43")
    if P.get('badmap'):
        e("s_and_b32 s24, s2, 15"); e("s_lshr_b32 s25, s2, 4")
    e("s_and_b32 s27, s26, 3")
    e("s_lshr_b32 s28, s26, 2")
    e("v_lshlrev_b32 v%d, 4, v%d" % (V_WVO, V_LANE))
    e("v_lshlrev_b32 v%d, 4, v%d" % (V_HVO, V_LANE))
    e("v_add_u32 v%d, 114688, v%d" % (V_HVO + 1, V_HVO))
    e("s_lshl_b32 s44, s26, 12")
    e("s_mul_i32 s41, s25, 458752")
    e("s_add_u32 s29, s44, s41")
    e("s_lshl_b32 s40, s24, 3")
    e("s_lshl_b32 s41, s27, 1")
    e("s_add_u32 s40, s40, s41")
    e("s_mul_i32 s40, s40, 114688")
    e("s_lshl_b32 s41, s28, 10")
    e("s_add_u32 s30, s40, s41")
    e("s_mov_b32 s14, %d" % (0 if (P.get('noload') or P.get('noload_a')) else F * D * 2)); e("s_mov_b32 s15, 0x00020000")
    e("s_mov_b32 s18, %d" % (0 if (P.get('noload') or P.get('noload_b')) else H_BYTES)); e("s_mov_b32 s19, 0x00020000")
    e("s_waitcnt lgkmcnt(0)")
    e("s_mov_b32 s16, s10"); e("s_and_b32 s17, s11, 0xffff")
    e("s_add_u32 s12, s16, %d" % WREL_OFF); e("s_addc_u32 s13, s17, 0")

    def dma4(stage):
        def f():
            if stage >= G2_STAGES: return
            e("s_add_u32 m0, s44, %d" % ((stage % G2_NSLOT) * G2_SLOT))
            e("s_add_u32 s40, s29, %d" % (stage * 32768))
            for j in range(4):
                e("buffer_load_dwordx4 v%d, s[12:15], s40 offen offset:%d lds" % (V_WVO, j * 1024))
                g.vm_issue(('d', stage, j))
        return f
    def dma1(stage, j):
        def f():
            if stage >= G2_STAGES: return
            if j == 0:
                e("s_add_u32 s45, s44, %d" % ((stage % G2_NSLOT) * G2_SLOT))
                e("s_add_u32 s41, s29, %d" % (stage * 32768))
            e("s_mov_b32 m0, s45")
            e("s_nop 0")
            e("buffer_load_dwordx4 v%d, s[12:15], s41 offen offset:%d lds" % (V_WVO, j * 1024))
            g.vm_issue(('d', stage, j))
        return f
    def ldh(u, mi):
        def f():
            if u >= G2_US: return
            r = hf(u, mi)
            if mi == 0 and (u & 1) == 0:
                e("s_add_u32 s31, s30, %d" % (u * 2048))
            e("buffer_load_dwordx4 a[%d:%d], v%d, s[16:19], s31 offen offset:%d" % (r, r + 3, V_HVO + mi, (u & 1) * 2048))
            g.vm_issue(('h', u, mi))
        return f
    def rd_w(u, nj, q):
        def f():
            if u >= G2_US: return
            r = wf(u & 1, nj) + 2 * q
            sl = (u >> 2) % G2_NSLOT
            e("ds_read_b64_tr_b16 a[%d:%d], v%d offset:%d" % (r, r + 1, V_RB + (sl >> 1) * 4 + nj, (sl & 1) * G2_SLOT + ((u & 3) * 64 + 16 * q) * 128))
            g.lg_issue(('w', u, nj, q))
        return f
    hq = list(range(G2_RING - 1))
    for st in range(G2_NSLOT):
        dma4(st)()
        take = hq[:4] if st < G2_NSLOT - 1 else hq
        hq = hq[len(take):]
        for u in take:
            for mi in range(2): ldh(u, mi)()
    e("v_lshrrev_b32 v%d, 3, v%d" % (V_T1, V_LANE))
    e("v_and_b32 v%d, 3, v%d" % (V_T1, V_T1))
    e("v_lshlrev_b32 v%d, 1, v%d" % (V_T1, V_T1))
    e("v_lshrrev_b32 v%d, 2, v%d" % (V_T2, V_LANE))
    e("v_lshlrev_b32 v%d, 7, v%d" % (V_T2, V_T2))
    e("v_and_b32 v%d, 3, v%d" % (V_T3, V_LANE))
    e("v_lshl_add_u32 v%d, v%d, 3, v%d" % (V_T2, V_T3, V_T2))
    e("s_lshl_b32 s40, s28, 12")
    e("v_add_u32 v%d, s40, v%d" % (V_T2, V_T2))
    for nj in range(4):
        e("v_xor_b32 v%d, %d, v%d" % (V_T3, 2 * nj, V_T1))
        e("v_lshl_add_u32 v%d, v%d, 4, v%d" % (V_RB + nj, V_T3, V_T2))
        for sp in range(1, NSP):
            e("v_add_u32 v%d, %d, v%d" % (V_RB + sp * 4 + nj, sp * 65536, V_RB + nj))
    e("s_mov_b32 s20, s6"); e("s_and_b32 s21, s7, 0xffff"); e("s_mov_b32 s22, %d" % (S * D * 2)); e("s_mov_b32 s23, 0x00020000")
    for r in range(ACC, ACC + 32): e("v_mov_b32 v%d, 0" % r)
    g.wait('p0', vm=[('d', 0, j) for j in range(4)])
    e("s_barrier")
    stamp(g, P, 1)
    for nj in range(4):
        for q in range(2): rd_w(0, nj, q)()

    def wstep(u):
        b = u & 1
        last = (u & 3) == 3
        t = u >> 2
        if last and t + 1 < G2_STAGES:
            g.wait(('b', u), vm=[('d', t + 1, j) for j in range(4)] + [('h', u, 0), ('h', u, 1)], lg='all')
            e("s_barrier")
        else:
            g.wait(('w', u), vm=[('h', u, 0), ('h', u, 1)], lg=[('w', u, nj, q) for nj in range(4) for q in range(2)])
        mf = []
        for nj in range(4):
            for mi in range(2):
                a = acc(mi, nj)
                mf.append("v_mfma_f32_16x16x32_bf16 v[%d:%d], a[%d:%d], a[%d:%d], v[%d:%d]" %
                          (a, a + 3, wf(b, nj), wf(b, nj) + 3, hf(u, mi), hf(u, mi) + 3, a, a + 3))
        extra = {}
        reads = [rd_w(u + 1, nj, q) for nj in range(4) for q in range(2)]
        for i, r in enumerate(reads): extra.setdefault(i // P.get('g2_rdper', 1), []).append(r)
        extra.setdefault(P.get('g2_h0', 1), []).append(ldh(u + G2_RING - 1, 0))
        extra.setdefault(P.get('g2_h1', 5), []).append(ldh(u + G2_RING - 1, 1))
        if P.get('g2_spread'):
            tt = (u + 1) >> 2
            j = (u + 1) & 3
            if u >= 3: extra.setdefault(P.get('g2_dpos', 7), []).append(dma1(tt + G2_NSLOT - 2 + 1 - 1 + 1 - 1, j) if False else dma1(tt - 1 + G2_NSLOT, j))
        elif last:
            extra.setdefault(P.get('g2_dpos', 7), []).append(dma4(t + G2_NSLOT))
        interleave(g, mf, extra)
    for u in range(G2_US): wstep(u)
    stamp(g, P, 2)
    e("s_waitcnt vmcnt(0) lgkmcnt(0)")
    e("s_barrier")
    e("s_lshl_b32 s40, s26, 12")
    e("v_lshlrev_b32 v%d, 4, v%d" % (V_T1, V_LANE))
    e("v_add_u32 v%d, s40, v%d" % (V_T2, V_T1))
    e("s_xor_b32 s41, s26, 4")
    e("s_lshl_b32 s41, s41, 12")
    e("v_add_u32 v%d, s41, v%d" % (V_T3, V_T1))
    e("s_nop 7"); e("s_nop 7")
    e("s_cmp_eq_u32 s28, 0")
    e("s_cbranch_scc0 G2_EP1")
    def ep(kh):
        own, snd = kh, 1 - kh
        for nj in range(4):
            a = acc(snd, nj)
            e("ds_write_b128 v%d, v[%d:%d] offset:%d" % (V_T2, a, a + 3, nj * 1024))
        e("s_waitcnt lgkmcnt(0)")
        e("s_barrier")
        for nj in range(4):
            a = acc(snd, nj)
            e("ds_read_b128 v[%d:%d], v%d offset:%d" % (a, a + 3, V_T3, nj * 1024))
        e("v_and_b32 v%d, 15, v%d" % (V_T1, V_LANE))
        e("v_lshrrev_b32 v%d, 4, v%d" % (V_T2, V_LANE))
        e("v_lshlrev_b32 v%d, 3, v%d" % (V_T2, V_T2))
        e("v_lshl_add_u32 v%d, v%d, 11, v%d" % (V_T1, V_T1, V_T2))
        e("s_lshl_b32 s40, s24, 7")
        e("s_lshl_b32 s41, s27, 5")
        e("s_add_u32 s40, s40, s41")
        e("s_add_u32 s40, s40, %d" % (16 * own))
        e("s_lshl_b32 s40, s40, 11")
        e("s_lshl_b32 s41, s25, 7")
        e("s_add_u32 s40, s40, s41")
        e("s_waitcnt lgkmcnt(0)")
        for nj in range(4):
            a = acc(own, nj); r = acc(snd, nj)
            e("v_pk_add_f32 v[%d:%d], v[%d:%d], v[%d:%d]" % (a, a + 1, a, a + 1, r, r + 1))
            e("v_pk_add_f32 v[%d:%d], v[%d:%d], v[%d:%d]" % (a + 2, a + 3, a + 2, a + 3, r + 2, r + 3))
        for nj in range(4):
            a = acc(own, nj)
            e("v_cvt_pk_bf16_f32 v%d, v%d, v%d" % (a, a, a + 1))
            e("v_cvt_pk_bf16_f32 v%d, v%d, v%d" % (a + 1, a + 2, a + 3))
        for nj in range(4):
            a = acc(own, nj)
            e("buffer_store_dwordx2 v[%d:%d], v%d, s[20:23], s40 offen offset:%d" % (a, a + 1, V_T1, nj * 32))
        e("s_branch G2_END")
    ep(0)
    g.label("G2_EP1")
    ep(1)
    g.label("G2_END")
    stamp(g, P, 3)
    if P.get('stamps'): e("s_add_u32 s16, s16, 0x1000000"); e("s_addc_u32 s17, s17, 0")
    stamp_dump(g, P, ("s16", "s17"), 6)
    g.label("G2_EXIT")
    e("s_endpgm")

HEADER = """; Kernarg layout for this problem (56 bytes, ptrs only, base s[0:1]):
; @launch kernel=gemm1_kernel grid=(256,1,1) block=(512,1,1) lds=%d
; @launch kernel=gemm2_kernel grid=(256,1,1) block=(512,1,1) lds=%d
.amdgcn_target "amdgcn-amd-amdhsa--gfx950"
.text
"""
def kd(name, nv, acc_off, ns=64):
    return """.amdhsa_kernel %s
  .amdhsa_next_free_vgpr %d
  .amdhsa_next_free_sgpr %d
  .amdhsa_accum_offset %d
  .amdhsa_group_segment_fixed_size 0
  .amdhsa_kernarg_size 56
  .amdhsa_user_sgpr_count 2
  .amdhsa_user_sgpr_kernarg_segment_ptr 1
  .amdhsa_system_sgpr_workgroup_id_x 1
.end_amdhsa_kernel
""" % (name, nv, ns, acc_off)

def build(P):
    out = [HEADER % (G1_LDS, G2_SLOT * P.get('g2_nslot', 4))]
    for name, fn in (("gemm1_kernel", gemm1), ("gemm2_kernel", gemm2)):
        g = Sim()
        g.nomfma = P.get('nomfma', False)
        g.drop = P.get('drop', ())
        fn(g, P)
        g.emit = True
        fn(g, P)
        out.append(".globl %s\n.p2align 8\n.type %s,@function\n" % (name, name) + "\n".join(g.lines) + "\n")
    out.append('.section .rodata,"a"\n.p2align 6\n' + kd("gemm1_kernel", 256, 168, 96) + ".p2align 6\n" + kd("gemm2_kernel", 64 + P.get("g2_ring", 8) * 8 + 32, 64, 80))
    return "".join(out)

DEFAULT = dict(g1_rd0=0, g1_dma=[3, 12, 20], g2_rdper=2, g2_h0=4, g2_h1=6, g2_dma=[4,5,6,7], wrel=1, g1_pf=0, g1_pfd=2)
if __name__ == "__main__":
    P = dict(DEFAULT)
    for a in sys.argv[2:]:
        k, v = a.split("=")
        P[k] = eval(v)
    txt = build(P)
    path = sys.argv[1] if len(sys.argv) > 1 else "standalone__geglu_ffn__prompt.s"
    open(path, "w").write(txt)
    print("wrote", path, len(txt))
```

```python
import sys

S, D, F = 2048, 1024, 3584
WREL_OFF = 0x1000000
H_BYTES = S * F * 2

class Sim:
    def __init__(self):
        self.emit = False
        self.lines = []
        self.vm = []; self.lg = []
        self.vmN = {}; self.lgN = {}
    def e(self, s):
        if self.emit:
            for sub in getattr(self, 'drop', ()):
                if sub in s: return
            self.lines.append("  " + s)
    def label(self, s):
        if self.emit: self.lines.append(s + ":")
    def vm_issue(self, tag):
        if not self.emit: self.vm.append(tag)
    def lg_issue(self, tag):
        if not self.emit: self.lg.append(tag)
    def _n(self, q, tags):
        idx = -1
        for t in tags:
            for i in range(len(q) - 1, -1, -1):
                if q[i] == t:
                    idx = max(idx, i); break
            else:
                raise KeyError(("tag never issued", t))
        return len(q) - 1 - idx
    def wait(self, site, vm=None, lg=None):
        if not self.emit:
            if vm is not None:
                n = 0 if vm == 'all' else self._n(self.vm, vm)
                self.vmN[site] = min(self.vmN.get(site, 1 << 30), n)
            if lg is not None:
                n = 0 if lg == 'all' else self._n(self.lg, lg)
                self.lgN[site] = min(self.lgN.get(site, 1 << 30), n)
            return
        parts = []
        if vm is not None and self.vmN[site] <= 63: parts.append("vmcnt(%d)" % self.vmN[site])
        if lg is not None: parts.append("lgkmcnt(%d)" % min(self.lgN[site], 15))
        if parts: self.e("s_waitcnt " + " ".join(parts))

def stamp(g, P, idx):
    if P.get('stamps'):
        g.e("s_memtime s[%d:%d]" % (66 + 2 * idx, 67 + 2 * idx))
        if idx == 0: g.e("s_memrealtime s[74:75]")
        if idx == 3: g.e("s_memrealtime s[76:77]")
def stamp_dump(g, P, wsreg, n):
    if not P.get('stamps'): return
    e = g.e
    e("s_waitcnt lgkmcnt(0) vmcnt(0)")
    e("s_add_u32 s60, %s, 0x8000000" % wsreg[0]); e("s_addc_u32 s61, %s, 0" % wsreg[1])
    e("s_mov_b32 s62, 0x1000000"); e("s_mov_b32 s63, 0x00020000")
    e("s_lshl_b32 s64, s2, 3"); e("s_add_u32 s64, s64, s26"); e("s_lshl_b32 s64, s64, 7")
    e("v_mov_b32 v11, 0")
    for i in range(n):
        e("v_mov_b32 v12, s%d" % (66 + 2 * i)); e("v_mov_b32 v13, s%d" % (67 + 2 * i))
        e("buffer_store_dwordx2 v[12:13], v11, s[60:63], s64 offen offset:%d" % (8 * i))
    e("s_waitcnt vmcnt(0)")

def interleave(g, main, extra):
    for f in extra.get(-1, []):
        f()
    for i, m in enumerate(main):
        if not getattr(g, 'nomfma', False): g.e(m)
        for f in extra.get(i, []):
            f()

G1_XSLOT = 32768; G1_NX = 3
G1_WSLOT = 14336; G1_NW = 4
G1_XB = G1_WSLOT * G1_NW
G1_LDS = G1_XB + G1_XSLOT * G1_NX
G1_STEPS = 32

def gemm1(g, P):
    ACC = 16
    NJS = [[0, 1, 2, 3], [4, 5, 6]]
    def acc(var, mi, mat, k): return ACC + ((mi * 2 + mat) * len(NJS[var]) + k) * 4
    T0 = 144
    def xf(b, mi): return b * 48 + mi * 4
    def wf(b, mat, k): return b * 48 + 16 + (mat * 4 + k) * 4
    V_LANE, V_XVO, V_WVO, V_XRB, V_WRB, V_T1, V_T2, V_T3, V_PFX, V_PFW = 1, 2, 6, 7, 11, 12, 13, 14, 15, 0
    e = g.e
    g.label("gemm1_kernel")
    e("s_cmp_ge_u32 s2, 256")
    e("s_cbranch_scc1 G1_EXIT")
    stamp(g, P, 0)
    e("s_load_dwordx4 s[4:7], s[0:1], 0")
    e("s_load_dwordx4 s[8:11], s[0:1], 16")
    e("s_load_dwordx2 s[48:49], s[0:1], 48")
    e("v_lshrrev_b32 v%d, 6, v0" % V_T1)
    e("v_and_b32 v%d, 63, v0" % V_LANE)
    e("s_and_b32 s40, s2, 7")
    e("v_readfirstlane_b32 s26, v%d" % V_T1)
    e("s_lshr_b32 s41, s2, 3")
    e("s_and_b32 s42, s40, 1")
    e("s_lshl_b32 s42, s42, 2")
    e("s_and_b32 s43, s41, 3")
    e("s_add_u32 s24, s42, s43")
    e("s_lshr_b32 s42, s40, 1")
    e("s_lshl_b32 s42, s42, 3")
    e("s_lshr_b32 s43, s41, 2")
    e("s_add_u32 s25, s42, s43")
    e("s_and_b32 s27, s26, 3")
    e("s_lshr_b32 s28, s26, 2")
    e("v_mul_u32_u24 v%d, 37, v%d" % (V_T1, V_LANE))
    e("v_lshrrev_b32 v%d, 9, v%d" % (V_T1, V_T1))
    e("v_mul_u32_u24 v%d, 14, v%d" % (V_T2, V_T1))
    e("v_sub_u32 v%d, v%d, v%d" % (V_T2, V_LANE, V_T2))
    e("v_mul_u32_u24 v%d, 7168, v%d" % (V_T1, V_T1))
    e("v_lshl_add_u32 v%d, v%d, 4, v%d" % (V_WVO, V_T2, V_T1))
    e("v_lshrrev_b32 v%d, 3, v%d" % (V_T1, V_LANE))
    e("v_lshrrev_b32 v%d, 4, v%d" % (V_T2, V_LANE))
    e("v_and_b32 v%d, 7, v%d" % (V_T3, V_LANE))
    e("v_xor_b32 v%d, v%d, v%d" % (V_T2, V_T2, V_T3))
    e("v_lshlrev_b32 v%d, 4, v%d" % (V_T2, V_T2))
    e("v_lshl_add_u32 v%d, v%d, 11, v%d" % (V_XVO, V_T1, V_T2))
    e("v_xor_b32 v%d, 64, v%d" % (V_T1, V_XVO))
    e("v_add_u32 v%d, 16384, v%d" % (V_XVO + 1, V_T1))
    e("v_add_u32 v%d, 32768, v%d" % (V_XVO + 2, V_XVO))
    e("v_add_u32 v%d, 49152, v%d" % (V_XVO + 3, V_T1))
    e("s_lshl_b32 s40, s24, 19")
    e("s_lshl_b32 s41, s26, 16")
    e("s_add_u32 s29, s40, s41")
    e("s_and_b32 s40, s27, 1")
    e("s_lshl_b32 s40, s40, 4")
    e("s_lshr_b32 s41, s27, 1")
    e("s_lshl_b32 s41, s41, 2")
    e("s_add_u32 s40, s40, s41")
    e("s_mul_i32 s40, s40, 7168")
    e("s_mul_i32 s41, s25, 224")
    e("s_add_u32 s31, s40, s41")
    e("s_lshl_b32 s44, s26, 12")
    e("s_add_u32 s44, s44, %d" % G1_XB)
    e("s_mul_i32 s45, s28, 7168")
    e("s_mul_i32 s40, s27, 1792")
    e("s_add_u32 s45, s45, s40")
    e("s_mov_b32 s36, -1"); e("s_mov_b32 s37, 0x00ffffff")
    e("s_mov_b32 s14, %d" % (0 if (P.get('noload') or P.get('noload_a')) else S * D * 2)); e("s_mov_b32 s15, 0x00020000")
    e("s_mov_b32 s18, %d" % (0 if (P.get('noload') or P.get('noload_b')) else D * F * 2)); e("s_mov_b32 s19, 0x00020000")
    e("s_cmp_eq_u32 s28, 0")
    e("s_waitcnt lgkmcnt(0)")
    e("s_cselect_b32 s16, s6, s8"); e("s_cselect_b32 s17, s7, s9"); e("s_and_b32 s17, s17, 0xffff")
    e("s_mov_b32 s12, s4"); e("s_and_b32 s13, s5, 0xffff")

    def dma_x(tile, j):
        def f():
            if tile >= 16: return
            e("s_add_u32 m0, s44, %d" % (((tile % G1_NX) * G1_XSLOT + j * 1024 - tile * 128) & 0xffffffff))
            e("s_nop 0")
            e("buffer_load_dwordx4 v%d, s[12:15], s29 offen offset:%d lds" % (V_XVO + j, tile * 128))
            g.vm_issue(('x', tile, j))
        return f
    def dma_w2(stage):
        def f():
            if stage >= G1_STEPS: return
            e("s_mov_b64 exec, s[36:37]")
            for j in range(2):
                e("s_add_u32 m0, s45, %d" % ((stage % G1_NW) * G1_WSLOT + j * 896))
                e("s_add_u32 s40, s31, %d" % (stage * 32 * 7168 + j * 8 * 7168))
                e("buffer_load_dwordx4 v%d, s[16:19], s40 offen lds" % V_WVO)
                g.vm_issue(('w', stage, j))
            e("s_mov_b64 exec, -1")
        return f
    dma_w2(0)()
    for j in range(4): dma_x(0, j)()
    dma_w2(1)()
    late = [dma_w2(2)] + [dma_x(1, j) for j in range(4)] + [dma_w2(3)] + [dma_x(2, j) for j in range(2)]
    NL = P.get('g1_late', 0)
    for f in late[:len(late) - NL]: f()
    late = late[len(late) - NL:]
    e("v_and_b32 v%d, 15, v%d" % (V_T1, V_LANE))
    e("v_lshrrev_b32 v%d, 1, v%d" % (V_T2, V_T1))
    e("v_lshrrev_b32 v%d, 4, v%d" % (V_T3, V_LANE))
    e("v_xor_b32 v%d, v%d, v%d" % (V_T2, V_T2, V_T3))
    e("v_lshlrev_b32 v%d, 4, v%d" % (V_T2, V_T2))
    e("v_lshl_add_u32 v%d, v%d, 7, v%d" % (V_XRB, V_T1, V_T2))
    e("s_lshl_b32 s40, s27, 13")
    e("s_add_u32 s40, s40, %d" % G1_XB)
    e("v_add_u32 v%d, s40, v%d" % (V_XRB, V_XRB))
    e("v_xor_b32 v%d, 64, v%d" % (V_XRB + 1, V_XRB))
    e("v_add_u32 v%d, 0x10000, v%d" % (V_XRB + 2, V_XRB))
    e("v_add_u32 v%d, 0x10000, v%d" % (V_XRB + 3, V_XRB + 1))
    e("v_lshrrev_b32 v%d, 2, v%d" % (V_T1, V_LANE))
    e("v_mul_u32_u24 v%d, 224, v%d" % (V_T1, V_T1))
    e("v_and_b32 v%d, 3, v%d" % (V_T2, V_LANE))
    e("v_lshl_add_u32 v%d, v%d, 3, v%d" % (V_WRB, V_T2, V_T1))
    e("s_mov_b32 s20, s48"); e("s_and_b32 s21, s49, 0xffff"); e("s_mov_b32 s22, %d" % H_BYTES); e("s_mov_b32 s23, 0x00020000")
    e("v_lshlrev_b32 v%d, 4, v%d" % (V_PFX, V_LANE))
    e("s_mul_i32 s62, s2, 28672")
    e("s_lshl_b32 s40, s26, 12")
    e("s_add_u32 s62, s62, s40")
    e("s_mov_b32 s48, s10"); e("s_and_b32 s49, s11, 0xffff"); e("s_mov_b32 s50, %d" % (F * D * 2)); e("s_mov_b32 s51, 0x00020000")
    CPA = ((G1_STEPS - 2) & 1) * 48
    def wrel_load():
        for j in range(4):
            e("buffer_load_dwordx4 a[%d:%d], v%d, s[48:51], s62 offen offset:%d" % (CPA + 4 * j, CPA + 4 * j + 3, V_PFX, 1024 * j))
            g.vm_issue(('cp', j))
    def wrel_store():
        e("s_add_u32 s84, s20, %d" % WREL_OFF); e("s_addc_u32 s85, s21, 0"); e("s_mov_b32 s86, %d" % (F * D * 2)); e("s_mov_b32 s87, 0x00020000")
        e("v_lshrrev_b32 v%d, 3, v%d" % (V_T1, V_LANE))
        e("s_mov_b32 s40, 458752")
        e("v_mul_lo_u32 v%d, v%d, s40" % (V_T1, V_T1))
        e("v_and_b32 v%d, 7, v%d" % (V_T2, V_LANE))
        e("s_mul_i32 s41, s2, 14")
        for j in range(4):
            e("s_lshl_b32 s42, s26, 1")
            e("s_add_u32 s42, s42, %d" % (j >> 1))
            e("s_add_u32 s43, s41, s42")
            e("s_lshr_b32 s40, s43, 1"); e("s_and_b32 s40, s40, 3"); e("s_lshl_b32 s40, s40, 1")
            e("v_xor_b32 v%d, s40, v%d" % (V_T3, V_T2))
            e("v_lshl_add_u32 v%d, v%d, 4, v%d" % (V_PFW, V_T3, V_T1))
            e("s_lshl_b32 s43, s43, 7")
            if j & 1: e("s_add_u32 s43, s43, %d" % (8 * 458752))
            e("s_cmp_lt_u32 s42, 14")
            e("s_cselect_b32 s43, s43, 0x7fff0000")
            e("buffer_store_dwordx4 a[%d:%d], v%d, s[84:87], s43 offen" % (CPA + 4 * j, CPA + 4 * j + 3, V_PFW))
    def rd_x(step, mi):
        def f():
            if step >= G1_STEPS: return
            sl = (step >> 1) % G1_NX
            base = V_XRB + (step & 1) + (2 if sl == 2 else 0)
            off = (sl & 1) * G1_XSLOT * (0 if sl == 2 else 1) + mi * 2048
            e("ds_read_b128 a[%d:%d], v%d offset:%d" % (xf(step & 1, mi), xf(step & 1, mi) + 3, base, off))
            g.lg_issue(('x', step, mi))
        return f
    def rd_w(step, var, mat, k, q):
        def f():
            if step >= G1_STEPS: return
            r = wf(step & 1, mat, k) + 2 * q
            e("ds_read_b64_tr_b16 a[%d:%d], v%d offset:%d" % (r, r + 1, V_WRB, (step % G1_NW) * G1_WSLOT + mat * 7168 + q * 3584 + NJS[var][k] * 32))
            g.lg_issue(('w', step, mat, k, q))
        return f
    for r in range(ACC, ACC + 128): e("v_mov_b32 v%d, 0" % r)
    g.wait('p0', vm=[('w', 0, 0), ('w', 0, 1)] + [('x', 0, j) for j in range(4)])
    e("s_barrier")
    stamp(g, P, 1)
    e("s_cmp_eq_u32 s28, 0")
    e("s_cbranch_scc0 G1_VAR1")

    def reads_for(s, var):
        nk = len(NJS[var])
        return [rd_x(s, mi) for mi in range(4)] + [rd_w(s, var, mat, k, q) for k in range(nk) for mat in range(2) for q in range(2)]
    def step(s, var):
        b = s & 1
        nk = len(NJS[var])
        if s + 1 < G1_STEPS:
            need = [('w', s + 1, 0), ('w', s + 1, 1)] + [('x', (s + 1) >> 1, j) for j in range(4)]
            g.wait(('s', s, var), vm=need, lg='all')
            e("s_barrier")
        else:
            g.wait(('s', s, var), lg='all')
        mf = []
        for k in range(nk):
            for mat in range(2):
                for mi in range(4):
                    a = acc(var, mi, mat, k)
                    mf.append("v_mfma_f32_16x16x32_bf16 v[%d:%d], a[%d:%d], a[%d:%d], v[%d:%d]" %
                              (a, a + 3, wf(b, mat, k), wf(b, mat, k) + 3, xf(b, mi), xf(b, mi) + 3, a, a + 3))
        extra = {}
        for i, r in enumerate(reads_for(s + 1, var)):
            extra.setdefault(P['g1_rd0'] + i, []).append(r)
        dp = P['g1_dma']
        extra.setdefault(dp[0], []).append(dma_w2(s + 4))
        if s & 1:
            T = (s - 1) >> 1
            extra.setdefault(dp[1], []).append(dma_x(T + 3, 0))
            extra.setdefault(dp[2], []).append(dma_x(T + 3, 1))
        else:
            T = (s - 2) >> 1
            extra.setdefault(dp[1], []).append(dma_x(T + 3, 2))
            extra.setdefault(dp[2], []).append(dma_x(T + 3, 3))
        if s == G1_STEPS - 1:
            extra.setdefault(0, []).append(wrel_load)
        interleave(g, mf, extra)

    import struct
    def f2u(x): return struct.unpack("<I", struct.pack("<f", x))[0]
    def variant(var):
        nk = len(NJS[var])
        for r in reads_for(0, var): r()
        for f in late: f()
        for s in range(G1_STEPS): step(s, var)
        stamp(g, P, 2)
        C1, C0, ONE = T0, T0 + 2, T0 + 4
        c = -2.0 * 0.7978845608028654 * 1.4426950408889634
        for r in (C1, C1 + 1): e("v_mov_b32 v%d, 0x%08x" % (r, f2u(c * 0.044715)))
        for r in (C0, C0 + 1): e("v_mov_b32 v%d, 0x%08x" % (r, f2u(c)))
        for r in (ONE, ONE + 1): e("v_mov_b32 v%d, 1.0" % r)
        e("v_lshlrev_b32 v%d, 4, v%d" % (V_T1, V_LANE))
        e("s_lshl_b32 s40, s24, 4")
        e("s_lshl_b32 s41, s27, 2")
        e("s_add_u32 s40, s40, s41")
        e("s_mul_i32 s40, s40, 114688")
        e("s_mul_i32 s41, s25, 7")
        e("s_lshr_b32 s42, s41, 1")
        e("s_lshl_b32 s42, s42, 10")
        e("s_add_u32 s52, s40, s42")
        e("s_add_u32 s53, s52, 114688")
        e("s_add_u32 s54, s53, 114688")
        e("s_add_u32 s55, s54, 114688")
        e("s_and_b32 s56, s25, 1")
        e("s_nop 7")
        TT = T0 + 8
        pairs = [(mi, k, hf) for k in range(nk) for mi in range(4) for hf in range(2)]
        def dest(mi, k, hf): return acc(var, mi, 0, 0) + 2 * k + hf
        for b0 in range(0, len(pairs), 4):
            grp = pairs[b0:b0 + 4]
            G_ = [acc(var, mi, 0, k) + 2 * hf for (mi, k, hf) in grp]
            U_ = [acc(var, mi, 1, k) + 2 * hf for (mi, k, hf) in grp]
            for i in range(4):
                t = TT + 2 * i; e("v_pk_mul_f32 v[%d:%d], v[%d:%d], v[%d:%d]" % (t, t + 1, G_[i], G_[i] + 1, G_[i], G_[i] + 1))
            for i in range(4):
                t = TT + 2 * i; e("v_pk_fma_f32 v[%d:%d], v[%d:%d], v[%d:%d], v[%d:%d]" % (t, t + 1, t, t + 1, C1, C1 + 1, C0, C0 + 1))
            for i in range(4):
                t = TT + 2 * i; e("v_pk_mul_f32 v[%d:%d], v[%d:%d], v[%d:%d]" % (t, t + 1, t, t + 1, G_[i], G_[i] + 1))
            for i in range(4):
                t = TT + 2 * i; e("v_exp_f32 v%d, v%d" % (t, t)); e("v_exp_f32 v%d, v%d" % (t + 1, t + 1))
            for i in range(4):
                e("v_pk_mul_f32 v[%d:%d], v[%d:%d], v[%d:%d]" % (U_[i], U_[i] + 1, G_[i], G_[i] + 1, U_[i], U_[i] + 1))
            for i in range(4):
                t = TT + 2 * i; e("v_pk_add_f32 v[%d:%d], v[%d:%d], v[%d:%d]" % (t, t + 1, t, t + 1, ONE, ONE + 1))
            for i in range(4):
                t = TT + 2 * i; e("v_rcp_f32 v%d, v%d" % (t, t)); e("v_rcp_f32 v%d, v%d" % (t + 1, t + 1))
            e("s_nop 0")
            for i in range(4):
                t = TT + 2 * i; e("v_pk_mul_f32 v[%d:%d], v[%d:%d], v[%d:%d]" % (t, t + 1, t, t + 1, U_[i], U_[i] + 1))
            for i, (mi, k, hf) in enumerate(grp):
                t = TT + 2 * i; e("v_cvt_pk_bf16_f32 v%d, v%d, v%d" % (dest(mi, k, hf), t, t + 1))
        e("s_cmp_eq_u32 s56, 0")
        e("s_cbranch_scc0 G1_ODD%d" % var)
        def st4(mi, k, chunk): e("buffer_store_dwordx4 v[%d:%d], v%d, s[20:23], s%d offen offset:%d" % (dest(mi, k, 0), dest(mi, k, 0) + 3, V_T1, 52 + mi, chunk * 1024))
        def st2(mi, k, chunk, hi): e("buffer_store_dwordx2 v[%d:%d], v%d, s[20:23], s%d offen offset:%d" % (dest(mi, k, 0), dest(mi, k, 0) + 1, V_T1, 52 + mi, chunk * 1024 + 8 * hi))
        for mi in range(4):
            if var == 0: st4(mi, 0, 0); st4(mi, 2, 1)
            else: st4(mi, 0, 2); st2(mi, 2, 3, 0)
        e("s_branch G1_END")
        g.label("G1_ODD%d" % var)
        for mi in range(4):
            if var == 0: st2(mi, 0, 0, 1); st4(mi, 1, 1); st2(mi, 3, 2, 0)
            else: st2(mi, 0, 2, 1); st4(mi, 1, 3)
        e("s_branch G1_END")
    if g.emit:
        variant(0)
        g.label("G1_VAR1")
        variant(1)
    else:
        save_vm, save_lg = list(g.vm), list(g.lg)
        variant(0)
        g.vm, g.lg = save_vm, save_lg
        variant(1)
    g.label("G1_END")
    e("s_waitcnt vmcnt(8)")
    wrel_store()
    stamp(g, P, 3)
    stamp_dump(g, P, ("s20", "s21"), 9)
    g.label("G1_EXIT")
    e("s_endpgm")

G2_SLOT = 32768
G2_STAGES = 14
G2_US = 56

def gemm2(g, P):
    e = g.e
    G2_RING = P.get('g2_ring', 8)
    G2_NSLOT = P.get('g2_nslot', 4)
    WF0 = G2_RING * 8
    ACC = 16
    def acc(mi, nj): return ACC + (mi * 4 + nj) * 4
    def hf(u, mi): return (u % G2_RING) * 8 + mi * 4
    def wf(b, nj): return WF0 + b * 16 + nj * 4
    V_LANE, V_WVO, V_HVO, V_T1, V_T2, V_T3 = 1, 2, 3, 5, 6, 7
    V_RB = 48
    NSP = (G2_NSLOT + 1) // 2
    g.label("gemm2_kernel")
    e("s_cmp_ge_u32 s2, 256")
    e("s_cbranch_scc1 G2_EXIT")
    stamp(g, P, 0)
    e("s_load_dwordx2 s[6:7], s[0:1], 32")
    e("s_load_dwordx2 s[10:11], s[0:1], 48")
    e("v_lshrrev_b32 v%d, 6, v0" % V_T1)
    e("v_and_b32 v%d, 63, v0" % V_LANE)
    e("s_and_b32 s40, s2, 7")
    e("v_readfirstlane_b32 s26, v%d" % V_T1)
    e("s_lshr_b32 s41, s2, 3")
    e("s_and_b32 s42, s40, 3")
    e("s_lshl_b32 s42, s42, 2")
    e("s_and_b32 s43, s41, 3")
    e("s_add_u32 s24, s42, s43")
    e("s_lshr_b32 s42, s40, 2")
    e("s_lshl_b32 s42, s42, 3")
    e("s_lshr_b32 s43, s41, 2")
    e("s_add_u32 s25, s42, s43")
    if P.get('badmap'):
        e("s_and_b32 s24, s2, 15"); e("s_lshr_b32 s25, s2, 4")
    e("s_and_b32 s27, s26, 3")
    e("s_lshr_b32 s28, s26, 2")
    e("v_lshlrev_b32 v%d, 4, v%d" % (V_WVO, V_LANE))
    e("v_lshlrev_b32 v%d, 4, v%d" % (V_HVO, V_LANE))
    e("v_add_u32 v%d, 114688, v%d" % (V_HVO + 1, V_HVO))
    e("s_lshl_b32 s44, s26, 12")
    e("s_mul_i32 s41, s25, 458752")
    e("s_add_u32 s29, s44, s41")
    e("s_lshl_b32 s40, s24, 3")
    e("s_lshl_b32 s41, s27, 1")
    e("s_add_u32 s40, s40, s41")
    e("s_mul_i32 s40, s40, 114688")
    e("s_lshl_b32 s41, s28, 10")
    e("s_add_u32 s30, s40, s41")
    e("s_mov_b32 s14, %d" % (0 if (P.get('noload') or P.get('noload_a')) else F * D * 2)); e("s_mov_b32 s15, 0x00020000")
    e("s_mov_b32 s18, %d" % (0 if (P.get('noload') or P.get('noload_b')) else H_BYTES)); e("s_mov_b32 s19, 0x00020000")
    e("s_waitcnt lgkmcnt(0)")
    e("s_mov_b32 s16, s10"); e("s_and_b32 s17, s11, 0xffff")
    e("s_add_u32 s12, s16, %d" % WREL_OFF); e("s_addc_u32 s13, s17, 0")

    def dma4(stage):
        def f():
            if stage >= G2_STAGES: return
            e("s_add_u32 m0, s44, %d" % ((stage % G2_NSLOT) * G2_SLOT))
            e("s_add_u32 s40, s29, %d" % (stage * 32768))
            for j in range(4):
                e("buffer_load_dwordx4 v%d, s[12:15], s40 offen offset:%d lds" % (V_WVO, j * 1024))
                g.vm_issue(('d', stage, j))
        return f
    def dma1(stage, j):
        def f():
            if stage >= G2_STAGES: return
            if j == 0:
                e("s_add_u32 s45, s44, %d" % ((stage % G2_NSLOT) * G2_SLOT))
                e("s_add_u32 s41, s29, %d" % (stage * 32768))
            e("s_mov_b32 m0, s45")
            e("s_nop 0")
            e("buffer_load_dwordx4 v%d, s[12:15], s41 offen offset:%d lds" % (V_WVO, j * 1024))
            g.vm_issue(('d', stage, j))
        return f
    def ldh(u, mi):
        def f():
            if u >= G2_US: return
            r = hf(u, mi)
            if mi == 0 and (u & 1) == 0:
                e("s_add_u32 s31, s30, %d" % (u * 2048))
            e("buffer_load_dwordx4 a[%d:%d], v%d, s[16:19], s31 offen offset:%d" % (r, r + 3, V_HVO + mi, (u & 1) * 2048))
            g.vm_issue(('h', u, mi))
        return f
    def rd_w(u, nj, q):
        def f():
            if u >= G2_US: return
            r = wf(u & 1, nj) + 2 * q
            sl = (u >> 2) % G2_NSLOT
            e("ds_read_b64_tr_b16 a[%d:%d], v%d offset:%d" % (r, r + 1, V_RB + (sl >> 1) * 4 + nj, (sl & 1) * G2_SLOT + ((u & 3) * 64 + 16 * q) * 128))
            g.lg_issue(('w', u, nj, q))
        return f
    hq = list(range(G2_RING - 1))
    for st in range(G2_NSLOT):
        dma4(st)()
        take = hq[:4] if st < G2_NSLOT - 1 else hq
        hq = hq[len(take):]
        for u in take:
            for mi in range(2): ldh(u, mi)()
    e("v_lshrrev_b32 v%d, 3, v%d" % (V_T1, V_LANE))
    e("v_and_b32 v%d, 3, v%d" % (V_T1, V_T1))
    e("v_lshlrev_b32 v%d, 1, v%d" % (V_T1, V_T1))
    e("v_lshrrev_b32 v%d, 2, v%d" % (V_T2, V_LANE))
    e("v_lshlrev_b32 v%d, 7, v%d" % (V_T2, V_T2))
    e("v_and_b32 v%d, 3, v%d" % (V_T3, V_LANE))
    e("v_lshl_add_u32 v%d, v%d, 3, v%d" % (V_T2, V_T3, V_T2))
    e("s_lshl_b32 s40, s28, 12")
    e("v_add_u32 v%d, s40, v%d" % (V_T2, V_T2))
    for nj in range(4):
        e("v_xor_b32 v%d, %d, v%d" % (V_T3, 2 * nj, V_T1))
        e("v_lshl_add_u32 v%d, v%d, 4, v%d" % (V_RB + nj, V_T3, V_T2))
        for sp in range(1, NSP):
            e("v_add_u32 v%d, %d, v%d" % (V_RB + sp * 4 + nj, sp * 65536, V_RB + nj))
    e("s_mov_b32 s20, s6"); e("s_and_b32 s21, s7, 0xffff"); e("s_mov_b32 s22, %d" % (S * D * 2)); e("s_mov_b32 s23, 0x00020000")
    for r in range(ACC, ACC + 32): e("v_mov_b32 v%d, 0" % r)
    g.wait('p0', vm=[('d', 0, j) for j in range(4)])
    e("s_barrier")
    stamp(g, P, 1)
    for nj in range(4):
        for q in range(2): rd_w(0, nj, q)()

    def wstep(u):
        b = u & 1
        last = (u & 3) == 3
        t = u >> 2
        if last and t + 1 < G2_STAGES:
            g.wait(('b', u), vm=[('d', t + 1, j) for j in range(4)] + [('h', u, 0), ('h', u, 1)], lg='all')
            e("s_barrier")
        else:
            g.wait(('w', u), vm=[('h', u, 0), ('h', u, 1)], lg=[('w', u, nj, q) for nj in range(4) for q in range(2)])
        mf = []
        for nj in range(4):
            for mi in range(2):
                a = acc(mi, nj)
                mf.append("v_mfma_f32_16x16x32_bf16 v[%d:%d], a[%d:%d], a[%d:%d], v[%d:%d]" %
                          (a, a + 3, wf(b, nj), wf(b, nj) + 3, hf(u, mi), hf(u, mi) + 3, a, a + 3))
        extra = {}
        reads = [rd_w(u + 1, nj, q) for nj in range(4) for q in range(2)]
        for i, r in enumerate(reads): extra.setdefault(i // P.get('g2_rdper', 1), []).append(r)
        extra.setdefault(P.get('g2_h0', 1), []).append(ldh(u + G2_RING - 1, 0))
        extra.setdefault(P.get('g2_h1', 5), []).append(ldh(u + G2_RING - 1, 1))
        if P.get('g2_spread'):
            tt = (u + 1) >> 2
            j = (u + 1) & 3
            if u >= 3: extra.setdefault(P.get('g2_dpos', 7), []).append(dma1(tt + G2_NSLOT - 2 + 1 - 1 + 1 - 1, j) if False else dma1(tt - 1 + G2_NSLOT, j))
        elif last:
            extra.setdefault(P.get('g2_dpos', 7), []).append(dma4(t + G2_NSLOT))
        interleave(g, mf, extra)
    for u in range(G2_US): wstep(u)
    stamp(g, P, 2)
    e("s_waitcnt vmcnt(0) lgkmcnt(0)")
    e("s_barrier")
    e("s_lshl_b32 s40, s26, 12")
    e("v_lshlrev_b32 v%d, 4, v%d" % (V_T1, V_LANE))
    e("v_add_u32 v%d, s40, v%d" % (V_T2, V_T1))
    e("s_xor_b32 s41, s26, 4")
    e("s_lshl_b32 s41, s41, 12")
    e("v_add_u32 v%d, s41, v%d" % (V_T3, V_T1))
    e("s_nop 7"); e("s_nop 7")
    e("s_cmp_eq_u32 s28, 0")
    e("s_cbranch_scc0 G2_EP1")
    def ep(kh):
        own, snd = kh, 1 - kh
        for nj in range(4):
            a = acc(snd, nj)
            e("ds_write_b128 v%d, v[%d:%d] offset:%d" % (V_T2, a, a + 3, nj * 1024))
        e("s_waitcnt lgkmcnt(0)")
        e("s_barrier")
        for nj in range(4):
            a = acc(snd, nj)
            e("ds_read_b128 v[%d:%d], v%d offset:%d" % (a, a + 3, V_T3, nj * 1024))
        e("v_and_b32 v%d, 15, v%d" % (V_T1, V_LANE))
        e("v_lshrrev_b32 v%d, 4, v%d" % (V_T2, V_LANE))
        e("v_lshlrev_b32 v%d, 3, v%d" % (V_T2, V_T2))
        e("v_lshl_add_u32 v%d, v%d, 11, v%d" % (V_T1, V_T1, V_T2))
        e("s_lshl_b32 s40, s24, 7")
        e("s_lshl_b32 s41, s27, 5")
        e("s_add_u32 s40, s40, s41")
        e("s_add_u32 s40, s40, %d" % (16 * own))
        e("s_lshl_b32 s40, s40, 11")
        e("s_lshl_b32 s41, s25, 7")
        e("s_add_u32 s40, s40, s41")
        e("s_waitcnt lgkmcnt(0)")
        for nj in range(4):
            a = acc(own, nj); r = acc(snd, nj)
            e("v_pk_add_f32 v[%d:%d], v[%d:%d], v[%d:%d]" % (a, a + 1, a, a + 1, r, r + 1))
            e("v_pk_add_f32 v[%d:%d], v[%d:%d], v[%d:%d]" % (a + 2, a + 3, a + 2, a + 3, r + 2, r + 3))
        for nj in range(4):
            a = acc(own, nj)
            e("v_cvt_pk_bf16_f32 v%d, v%d, v%d" % (a, a, a + 1))
            e("v_cvt_pk_bf16_f32 v%d, v%d, v%d" % (a + 1, a + 2, a + 3))
        for nj in range(4):
            a = acc(own, nj)
            e("buffer_store_dwordx2 v[%d:%d], v%d, s[20:23], s40 offen offset:%d" % (a, a + 1, V_T1, nj * 32))
        e("s_branch G2_END")
    ep(0)
    g.label("G2_EP1")
    ep(1)
    g.label("G2_END")
    stamp(g, P, 3)
    if P.get('stamps'): e("s_add_u32 s16, s16, 0x1000000"); e("s_addc_u32 s17, s17, 0")
    stamp_dump(g, P, ("s16", "s17"), 6)
    g.label("G2_EXIT")
    e("s_endpgm")

HEADER = """; Kernarg layout for this problem (56 bytes, ptrs only, base s[0:1]):
; @launch kernel=gemm1_kernel grid=(256,1,1) block=(512,1,1) lds=%d
; @launch kernel=gemm2_kernel grid=(256,1,1) block=(512,1,1) lds=%d
.amdgcn_target "amdgcn-amd-amdhsa--gfx950"
.text
"""
def kd(name, nv, acc_off, ns=64):
    return """.amdhsa_kernel %s
  .amdhsa_next_free_vgpr %d
  .amdhsa_next_free_sgpr %d
  .amdhsa_accum_offset %d
  .amdhsa_group_segment_fixed_size 0
  .amdhsa_kernarg_size 56
  .amdhsa_user_sgpr_count 2
  .amdhsa_user_sgpr_kernarg_segment_ptr 1
  .amdhsa_system_sgpr_workgroup_id_x 1
.end_amdhsa_kernel
""" % (name, nv, ns, acc_off)

def build(P):
    out = [HEADER % (G1_LDS, G2_SLOT * P.get('g2_nslot', 4))]
    for name, fn in (("gemm1_kernel", gemm1), ("gemm2_kernel", gemm2)):
        g = Sim()
        g.nomfma = P.get('nomfma', False)
        g.drop = P.get('drop', ())
        fn(g, P)
        g.emit = True
        fn(g, P)
        out.append(".globl %s\n.p2align 8\n.type %s,@function\n" % (name, name) + "\n".join(g.lines) + "\n")
    out.append('.section .rodata,"a"\n.p2align 6\n' + kd("gemm1_kernel", 256, 160, 96) + ".p2align 6\n" + kd("gemm2_kernel", 64 + P.get("g2_ring", 8) * 8 + 32, 64, 80))
    return "".join(out)

DEFAULT = dict(g1_rd0=0, g1_dma=[3, 12, 20], g2_rdper=2, g2_h0=4, g2_h1=6, g2_dma=[4,5,6,7], wrel=1, g1_pf=0, g1_pfd=2)
if __name__ == "__main__":
    P = dict(DEFAULT)
    for a in sys.argv[2:]:
        k, v = a.split("=")
        P[k] = eval(v)
    txt = build(P)
    path = sys.argv[1] if len(sys.argv) > 1 else "standalone__geglu_ffn__prompt.s"
    open(path, "w").write(txt)
    print("wrote", path, len(txt))
```

```python
import sys

S, D, F = 2048, 1024, 3584
WREL_OFF = 0x1000000
H_BYTES = S * F * 2

class Sim:
    def __init__(self):
        self.emit = False
        self.lines = []
        self.vm = []; self.lg = []
        self.vmN = {}; self.lgN = {}
    def e(self, s):
        if self.emit:
            for sub in getattr(self, 'drop', ()):
                if sub in s: return
            self.lines.append("  " + s)
    def label(self, s):
        if self.emit: self.lines.append(s + ":")
    def vm_issue(self, tag):
        if not self.emit: self.vm.append(tag)
    def lg_issue(self, tag):
        if not self.emit: self.lg.append(tag)
    def _n(self, q, tags):
        idx = -1
        for t in tags:
            for i in range(len(q) - 1, -1, -1):
                if q[i] == t:
                    idx = max(idx, i); break
            else:
                raise KeyError(("tag never issued", t))
        return len(q) - 1 - idx
    def wait(self, site, vm=None, lg=None):
        if not self.emit:
            if vm is not None:
                n = 0 if vm == 'all' else self._n(self.vm, vm)
                self.vmN[site] = min(self.vmN.get(site, 1 << 30), n)
            if lg is not None:
                n = 0 if lg == 'all' else self._n(self.lg, lg)
                self.lgN[site] = min(self.lgN.get(site, 1 << 30), n)
            return
        parts = []
        if vm is not None and self.vmN[site] <= 63: parts.append("vmcnt(%d)" % self.vmN[site])
        if lg is not None: parts.append("lgkmcnt(%d)" % min(self.lgN[site], 15))
        if parts: self.e("s_waitcnt " + " ".join(parts))

def stamp(g, P, idx):
    if P.get('stamps'):
        g.e("s_memtime s[%d:%d]" % (66 + 2 * idx, 67 + 2 * idx))
        if idx == 0: g.e("s_memrealtime s[74:75]")
        if idx == 3: g.e("s_memrealtime s[76:77]")
def stamp_dump(g, P, wsreg, n):
    if not P.get('stamps'): return
    e = g.e
    e("s_waitcnt lgkmcnt(0) vmcnt(0)")
    e("s_add_u32 s60, %s, 0x8000000" % wsreg[0]); e("s_addc_u32 s61, %s, 0" % wsreg[1])
    e("s_mov_b32 s62, 0x1000000"); e("s_mov_b32 s63, 0x00020000")
    e("s_lshl_b32 s64, s2, 3"); e("s_add_u32 s64, s64, s26"); e("s_lshl_b32 s64, s64, 7")
    e("v_mov_b32 v11, 0")
    for i in range(n):
        e("v_mov_b32 v12, s%d" % (66 + 2 * i)); e("v_mov_b32 v13, s%d" % (67 + 2 * i))
        e("buffer_store_dwordx2 v[12:13], v11, s[60:63], s64 offen offset:%d" % (8 * i))
    e("s_waitcnt vmcnt(0)")

def interleave(g, main, extra):
    for f in extra.get(-1, []):
        f()
    for i, m in enumerate(main):
        if not getattr(g, 'nomfma', False): g.e(m)
        for f in extra.get(i, []):
            f()

G1_XSLOT = 32768; G1_NX = 3
G1_WSLOT = 14336; G1_NW = 4
G1_XB = G1_WSLOT * G1_NW
G1_LDS = G1_XB + G1_XSLOT * G1_NX
G1_STEPS = 32

def gemm1(g, P):
    ACC = 16
    NJS = [[0, 1, 2, 3], [4, 5, 6]]
    def acc(var, mi, mat, k): return ACC + ((mi * 2 + mat) * len(NJS[var]) + k) * 4
    T0 = 144
    def xf(b, mi): return b * 48 + mi * 4
    def wf(b, mat, k): return b * 48 + 16 + (mat * 4 + k) * 4
    V_LANE, V_XVO, V_WVO, V_XRB, V_WRB, V_T1, V_T2, V_T3, V_PFX, V_PFW = 1, 2, 6, 7, 11, 12, 13, 14, 15, 0
    e = g.e
    g.label("gemm1_kernel")
    e("s_cmp_ge_u32 s2, 256")
    e("s_cbranch_scc1 G1_EXIT")
    stamp(g, P, 0)
    e("s_load_dwordx4 s[4:7], s[0:1], 0")
    e("s_load_dwordx4 s[8:11], s[0:1], 16")
    e("s_load_dwordx2 s[48:49], s[0:1], 48")
    e("v_lshrrev_b32 v%d, 6, v0" % V_T1)
    e("v_and_b32 v%d, 63, v0" % V_LANE)
    e("s_and_b32 s40, s2, 7")
    e("v_readfirstlane_b32 s26, v%d" % V_T1)
    e("s_lshr_b32 s41, s2, 3")
    e("s_and_b32 s42, s40, 1")
    e("s_lshl_b32 s42, s42, 2")
    e("s_and_b32 s43, s41, 3")
    e("s_add_u32 s24, s42, s43")
    e("s_lshr_b32 s42, s40, 1")
    e("s_lshl_b32 s42, s42, 3")
    e("s_lshr_b32 s43, s41, 2")
    e("s_add_u32 s25, s42, s43")
    e("s_and_b32 s27, s26, 3")
    e("s_lshr_b32 s28, s26, 2")
    e("v_mul_u32_u24 v%d, 37, v%d" % (V_T1, V_LANE))
    e("v_lshrrev_b32 v%d, 9, v%d" % (V_T1, V_T1))
    e("v_mul_u32_u24 v%d, 14, v%d" % (V_T2, V_T1))
    e("v_sub_u32 v%d, v%d, v%d" % (V_T2, V_LANE, V_T2))
    e("v_mul_u32_u24 v%d, 7168, v%d" % (V_T1, V_T1))
    e("v_lshl_add_u32 v%d, v%d, 4, v%d" % (V_WVO, V_T2, V_T1))
    e("v_lshrrev_b32 v%d, 3, v%d" % (V_T1, V_LANE))
    e("v_lshrrev_b32 v%d, 4, v%d" % (V_T2, V_LANE))
    e("v_and_b32 v%d, 7, v%d" % (V_T3, V_LANE))
    e("v_xor_b32 v%d, v%d, v%d" % (V_T2, V_T2, V_T3))
    e("v_lshlrev_b32 v%d, 4, v%d" % (V_T2, V_T2))
    e("v_lshl_add_u32 v%d, v%d, 11, v%d" % (V_XVO, V_T1, V_T2))
    e("v_xor_b32 v%d, 64, v%d" % (V_T1, V_XVO))
    e("v_add_u32 v%d, 16384, v%d" % (V_XVO + 1, V_T1))
    e("v_add_u32 v%d, 32768, v%d" % (V_XVO + 2, V_XVO))
    e("v_add_u32 v%d, 49152, v%d" % (V_XVO + 3, V_T1))
    e("s_lshl_b32 s40, s24, 19")
    e("s_lshl_b32 s41, s26, 16")
    e("s_add_u32 s29, s40, s41")
    e("s_and_b32 s40, s27, 1")
    e("s_lshl_b32 s40, s40, 4")
    e("s_lshr_b32 s41, s27, 1")
    e("s_lshl_b32 s41, s41, 2")
    e("s_add_u32 s40, s40, s41")
    e("s_mul_i32 s40, s40, 7168")
    e("s_mul_i32 s41, s25, 224")
    e("s_add_u32 s31, s40, s41")
    e("s_lshl_b32 s44, s26, 12")
    e("s_add_u32 s44, s44, %d" % G1_XB)
    e("s_mul_i32 s45, s28, 7168")
    e("s_mul_i32 s40, s27, 1792")
    e("s_add_u32 s45, s45, s40")
    e("s_mov_b32 s36, -1"); e("s_mov_b32 s37, 0x00ffffff")
    e("s_mov_b32 s14, %d" % (0 if (P.get('noload') or P.get('noload_a')) else S * D * 2)); e("s_mov_b32 s15, 0x00020000")
    e("s_mov_b32 s18, %d" % (0 if (P.get('noload') or P.get('noload_b')) else D * F * 2)); e("s_mov_b32 s19, 0x00020000")
    e("s_cmp_eq_u32 s28, 0")
    e("s_waitcnt lgkmcnt(0)")
    e("s_cselect_b32 s16, s6, s8"); e("s_cselect_b32 s17, s7, s9"); e("s_and_b32 s17, s17, 0xffff")
    e("s_mov_b32 s12, s4"); e("s_and_b32 s13, s5, 0xffff")

    def dma_x(tile, j):
        def f():
            if tile >= 16: return
            e("s_add_u32 m0, s44, %d" % (((tile % G1_NX) * G1_XSLOT + j * 1024 - tile * 128) & 0xffffffff))
            e("s_nop 0")
            e("buffer_load_dwordx4 v%d, s[12:15], s29 offen offset:%d lds" % (V_XVO + j, tile * 128))
            g.vm_issue(('x', tile, j))
        return f
    def dma_w2(stage):
        def f():
            if stage >= G1_STEPS: return
            e("s_mov_b64 exec, s[36:37]")
            for j in range(2):
                e("s_add_u32 m0, s45, %d" % ((stage % G1_NW) * G1_WSLOT + j * 896))
                e("s_add_u32 s40, s31, %d" % (stage * 32 * 7168 + j * 8 * 7168))
                e("buffer_load_dwordx4 v%d, s[16:19], s40 offen lds" % V_WVO)
                g.vm_issue(('w', stage, j))
            e("s_mov_b64 exec, -1")
        return f
    dma_w2(0)()
    for j in range(4): dma_x(0, j)()
    dma_w2(1)()
    late = [dma_w2(2)] + [dma_x(1, j) for j in range(4)] + [dma_w2(3)] + [dma_x(2, j) for j in range(2)]
    NL = P.get('g1_late', 0)
    for f in late[:len(late) - NL]: f()
    late = late[len(late) - NL:]
    e("v_and_b32 v%d, 15, v%d" % (V_T1, V_LANE))
    e("v_lshrrev_b32 v%d, 1, v%d" % (V_T2, V_T1))
    e("v_lshrrev_b32 v%d, 4, v%d" % (V_T3, V_LANE))
    e("v_xor_b32 v%d, v%d, v%d" % (V_T2, V_T2, V_T3))
    e("v_lshlrev_b32 v%d, 4, v%d" % (V_T2, V_T2))
    e("v_lshl_add_u32 v%d, v%d, 7, v%d" % (V_XRB, V_T1, V_T2))
    e("s_lshl_b32 s40, s27, 13")
    e("s_add_u32 s40, s40, %d" % G1_XB)
    e("v_add_u32 v%d, s40, v%d" % (V_XRB, V_XRB))
    e("v_xor_b32 v%d, 64, v%d" % (V_XRB + 1, V_XRB))
    e("v_add_u32 v%d, 0x10000, v%d" % (V_XRB + 2, V_XRB))
    e("v_add_u32 v%d, 0x10000, v%d" % (V_XRB + 3, V_XRB + 1))
    e("v_lshrrev_b32 v%d, 2, v%d" % (V_T1, V_LANE))
    e("v_mul_u32_u24 v%d, 224, v%d" % (V_T1, V_T1))
    e("v_and_b32 v%d, 3, v%d" % (V_T2, V_LANE))
    e("v_lshl_add_u32 v%d, v%d, 3, v%d" % (V_WRB, V_T2, V_T1))
    e("s_mov_b32 s20, s48"); e("s_and_b32 s21, s49, 0xffff"); e("s_mov_b32 s22, %d" % H_BYTES); e("s_mov_b32 s23, 0x00020000")
    e("v_lshlrev_b32 v%d, 4, v%d" % (V_PFX, V_LANE))
    e("s_mul_i32 s62, s2, 28672")
    e("s_lshl_b32 s40, s26, 12")
    e("s_add_u32 s62, s62, s40")
    e("s_mov_b32 s48, s10"); e("s_and_b32 s49, s11, 0xffff"); e("s_mov_b32 s50, %d" % (F * D * 2)); e("s_mov_b32 s51, 0x00020000")
    CPV = 112
    def wrel_load():
        e("s_mul_i32 s62, s2, 28672")
        e("s_mul_i32 s40, s27, 7168")
        e("s_add_u32 s62, s62, s40")
        e("s_add_u32 s63, s62, 4096")
        for j in range(7):
            e("buffer_load_dwordx4 v[%d:%d], v%d, s[48:51], %s offen offset:%d" % (CPV + 4 * j, CPV + 4 * j + 3, V_PFX, "s62" if j < 4 else "s63", 1024 * (j & 3)))
            g.vm_issue(('cp', j))
    def wrel_store():
        g.wait(('cpw',), vm=[('cp', j) for j in range(7)])
        e("s_add_u32 s84, s20, %d" % WREL_OFF); e("s_addc_u32 s85, s21, 0"); e("s_mov_b32 s86, %d" % (F * D * 2)); e("s_mov_b32 s87, 0x00020000")
        e("v_lshrrev_b32 v%d, 3, v%d" % (V_T1, V_LANE))
        e("s_mov_b32 s40, 458752")
        e("v_mul_lo_u32 v%d, v%d, s40" % (V_T1, V_T1))
        e("v_and_b32 v%d, 7, v%d" % (V_T2, V_LANE))
        e("s_mul_i32 s41, s2, 14")
        e("s_mul_i32 s63, s27, 7")
        for j in range(7):
            e("s_add_u32 s42, s63, %d" % j)
            e("s_and_b32 s62, s42, 1")
            e("s_lshr_b32 s42, s42, 1")
            e("s_add_u32 s43, s41, s42")
            e("s_lshr_b32 s40, s43, 1"); e("s_and_b32 s40, s40, 3"); e("s_lshl_b32 s40, s40, 1")
            e("v_xor_b32 v%d, s40, v%d" % (V_T3, V_T2))
            e("v_lshl_add_u32 v%d, v%d, 4, v%d" % (V_PFW, V_T3, V_T1))
            e("s_lshl_b32 s43, s43, 7")
            e("s_mul_i32 s62, s62, %d" % (8 * 458752))
            e("s_add_u32 s43, s43, s62")
            e("buffer_store_dwordx4 v[%d:%d], v%d, s[84:87], s43 offen" % (CPV + 4 * j, CPV + 4 * j + 3, V_PFW))
            g.vm_issue(('cs', j))
    def rd_x(step, mi):
        def f():
            if step >= G1_STEPS: return
            sl = (step >> 1) % G1_NX
            base = V_XRB + (step & 1) + (2 if sl == 2 else 0)
            off = (sl & 1) * G1_XSLOT * (0 if sl == 2 else 1) + mi * 2048
            e("ds_read_b128 a[%d:%d], v%d offset:%d" % (xf(step & 1, mi), xf(step & 1, mi) + 3, base, off))
            g.lg_issue(('x', step, mi))
        return f
    def rd_w(step, var, mat, k, q):
        def f():
            if step >= G1_STEPS: return
            r = wf(step & 1, mat, k) + 2 * q
            e("ds_read_b64_tr_b16 a[%d:%d], v%d offset:%d" % (r, r + 1, V_WRB, (step % G1_NW) * G1_WSLOT + mat * 7168 + q * 3584 + NJS[var][k] * 32))
            g.lg_issue(('w', step, mat, k, q))
        return f
    for r in range(ACC, ACC + 128): e("v_mov_b32 v%d, 0" % r)
    g.wait('p0', vm=[('w', 0, 0), ('w', 0, 1)] + [('x', 0, j) for j in range(4)])
    e("s_barrier")
    stamp(g, P, 1)
    e("s_cmp_eq_u32 s28, 0")
    e("s_cbranch_scc0 G1_VAR1")

    def reads_for(s, var):
        nk = len(NJS[var])
        return [rd_x(s, mi) for mi in range(4)] + [rd_w(s, var, mat, k, q) for k in range(nk) for mat in range(2) for q in range(2)]
    def step(s, var):
        b = s & 1
        nk = len(NJS[var])
        if s + 1 < G1_STEPS:
            need = [('w', s + 1, 0), ('w', s + 1, 1)] + [('x', (s + 1) >> 1, j) for j in range(4)]
            g.wait(('s', s, var), vm=need, lg='all')
            e("s_barrier")
        else:
            g.wait(('s', s, var), lg='all')
        mf = []
        for k in range(nk):
            for mat in range(2):
                for mi in range(4):
                    a = acc(var, mi, mat, k)
                    mf.append("v_mfma_f32_16x16x32_bf16 v[%d:%d], a[%d:%d], a[%d:%d], v[%d:%d]" %
                              (a, a + 3, wf(b, mat, k), wf(b, mat, k) + 3, xf(b, mi), xf(b, mi) + 3, a, a + 3))
        extra = {}
        for i, r in enumerate(reads_for(s + 1, var)):
            extra.setdefault(P['g1_rd0'] + i, []).append(r)
        dp = P['g1_dma']
        extra.setdefault(dp[0], []).append(dma_w2(s + 4))
        if s & 1:
            T = (s - 1) >> 1
            extra.setdefault(dp[1], []).append(dma_x(T + 3, 0))
            extra.setdefault(dp[2], []).append(dma_x(T + 3, 1))
        else:
            T = (s - 2) >> 1
            extra.setdefault(dp[1], []).append(dma_x(T + 3, 2))
            extra.setdefault(dp[2], []).append(dma_x(T + 3, 3))
        if var == 1 and s == P.get('wrel_step', 18):
            extra.setdefault(dp[2], []).append(wrel_load)
        if var == 1 and s == P.get('wrel_step', 18) + P.get('wrel_gap', 6):
            extra.setdefault(dp[2], []).append(wrel_store)
        interleave(g, mf, extra)

    import struct
    def f2u(x): return struct.unpack("<I", struct.pack("<f", x))[0]
    def variant(var):
        nk = len(NJS[var])
        for r in reads_for(0, var): r()
        for f in late: f()
        for s in range(G1_STEPS): step(s, var)
        stamp(g, P, 2)
        C1, C0, ONE = T0, T0 + 2, T0 + 4
        c = -2.0 * 0.7978845608028654 * 1.4426950408889634
        for r in (C1, C1 + 1): e("v_mov_b32 v%d, 0x%08x" % (r, f2u(c * 0.044715)))
        for r in (C0, C0 + 1): e("v_mov_b32 v%d, 0x%08x" % (r, f2u(c)))
        for r in (ONE, ONE + 1): e("v_mov_b32 v%d, 1.0" % r)
        e("v_lshlrev_b32 v%d, 4, v%d" % (V_T1, V_LANE))
        e("s_lshl_b32 s40, s24, 4")
        e("s_lshl_b32 s41, s27, 2")
        e("s_add_u32 s40, s40, s41")
        e("s_mul_i32 s40, s40, 114688")
        e("s_mul_i32 s41, s25, 7")
        e("s_lshr_b32 s42, s41, 1")
        e("s_lshl_b32 s42, s42, 10")
        e("s_add_u32 s52, s40, s42")
        e("s_add_u32 s53, s52, 114688")
        e("s_add_u32 s54, s53, 114688")
        e("s_add_u32 s55, s54, 114688")
        e("s_and_b32 s56, s25, 1")
        e("s_nop 7")
        TT = T0 + 8
        pairs = [(mi, k, hf) for k in range(nk) for mi in range(4) for hf in range(2)]
        def dest(mi, k, hf): return acc(var, mi, 0, 0) + 2 * k + hf
        for b0 in range(0, len(pairs), 4):
            grp = pairs[b0:b0 + 4]
            G_ = [acc(var, mi, 0, k) + 2 * hf for (mi, k, hf) in grp]
            U_ = [acc(var, mi, 1, k) + 2 * hf for (mi, k, hf) in grp]
            for i in range(4):
                t = TT + 2 * i; e("v_pk_mul_f32 v[%d:%d], v[%d:%d], v[%d:%d]" % (t, t + 1, G_[i], G_[i] + 1, G_[i], G_[i] + 1))
            for i in range(4):
                t = TT + 2 * i; e("v_pk_fma_f32 v[%d:%d], v[%d:%d], v[%d:%d], v[%d:%d]" % (t, t + 1, t, t + 1, C1, C1 + 1, C0, C0 + 1))
            for i in range(4):
                t = TT + 2 * i; e("v_pk_mul_f32 v[%d:%d], v[%d:%d], v[%d:%d]" % (t, t + 1, t, t + 1, G_[i], G_[i] + 1))
            for i in range(4):
                t = TT + 2 * i; e("v_exp_f32 v%d, v%d" % (t, t)); e("v_exp_f32 v%d, v%d" % (t + 1, t + 1))
            for i in range(4):
                e("v_pk_mul_f32 v[%d:%d], v[%d:%d], v[%d:%d]" % (U_[i], U_[i] + 1, G_[i], G_[i] + 1, U_[i], U_[i] + 1))
            for i in range(4):
                t = TT + 2 * i; e("v_pk_add_f32 v[%d:%d], v[%d:%d], v[%d:%d]" % (t, t + 1, t, t + 1, ONE, ONE + 1))
            for i in range(4):
                t = TT + 2 * i; e("v_rcp_f32 v%d, v%d" % (t, t)); e("v_rcp_f32 v%d, v%d" % (t + 1, t + 1))
            e("s_nop 0")
            for i in range(4):
                t = TT + 2 * i; e("v_pk_mul_f32 v[%d:%d], v[%d:%d], v[%d:%d]" % (t, t + 1, t, t + 1, U_[i], U_[i] + 1))
            for i, (mi, k, hf) in enumerate(grp):
                t = TT + 2 * i; e("v_cvt_pk_bf16_f32 v%d, v%d, v%d" % (dest(mi, k, hf), t, t + 1))
        e("s_cmp_eq_u32 s56, 0")
        e("s_cbranch_scc0 G1_ODD%d" % var)
        def st4(mi, k, chunk): e("buffer_store_dwordx4 v[%d:%d], v%d, s[20:23], s%d offen offset:%d" % (dest(mi, k, 0), dest(mi, k, 0) + 3, V_T1, 52 + mi, chunk * 1024))
        def st2(mi, k, chunk, hi): e("buffer_store_dwordx2 v[%d:%d], v%d, s[20:23], s%d offen offset:%d" % (dest(mi, k, 0), dest(mi, k, 0) + 1, V_T1, 52 + mi, chunk * 1024 + 8 * hi))
        for mi in range(4):
            if var == 0: st4(mi, 0, 0); st4(mi, 2, 1)
            else: st4(mi, 0, 2); st2(mi, 2, 3, 0)
        e("s_branch G1_END")
        g.label("G1_ODD%d" % var)
        for mi in range(4):
            if var == 0: st2(mi, 0, 0, 1); st4(mi, 1, 1); st2(mi, 3, 2, 0)
            else: st2(mi, 0, 2, 1); st4(mi, 1, 3)
        e("s_branch G1_END")
    if g.emit:
        variant(0)
        g.label("G1_VAR1")
        variant(1)
    else:
        save_vm, save_lg = list(g.vm), list(g.lg)
        variant(0)
        g.vm, g.lg = save_vm, save_lg
        variant(1)
    g.label("G1_END")
    stamp(g, P, 3)
    stamp_dump(g, P, ("s20", "s21"), 9)
    g.label("G1_EXIT")
    e("s_endpgm")

G2_SLOT = 32768
G2_STAGES = 14
G2_US = 56

def gemm2(g, P):
    e = g.e
    G2_RING = P.get('g2_ring', 8)
    G2_NSLOT = P.get('g2_nslot', 4)
    WF0 = G2_RING * 8
    ACC = 16
    def acc(mi, nj): return ACC + (mi * 4 + nj) * 4
    def hf(u, mi): return (u % G2_RING) * 8 + mi * 4
    def wf(b, nj): return WF0 + b * 16 + nj * 4
    V_LANE, V_WVO, V_HVO, V_T1, V_T2, V_T3 = 1, 2, 3, 5, 6, 7
    V_RB = 48
    NSP = (G2_NSLOT + 1) // 2
    g.label("gemm2_kernel")
    e("s_cmp_ge_u32 s2, 256")
    e("s_cbranch_scc1 G2_EXIT")
    stamp(g, P, 0)
    e("s_load_dwordx2 s[6:7], s[0:1], 32")
    e("s_load_dwordx2 s[10:11], s[0:1], 48")
    e("v_lshrrev_b32 v%d, 6, v0" % V_T1)
    e("v_and_b32 v%d, 63, v0" % V_LANE)
    e("s_and_b32 s40, s2, 7")
    e("v_readfirstlane_b32 s26, v%d" % V_T1)
    e("s_lshr_b32 s41, s2, 3")
    e("s_and_b32 s42, s40, 3")
    e("s_lshl_b32 s42, s42, 2")
    e("s_and_b32 s43, s41, 3")
    e("s_add_u32 s24, s42, s43")
    e("s_lshr_b32 s42, s40, 2")
    e("s_lshl_b32 s42, s42, 3")
    e("s_lshr_b32 s43, s41, 2")
    e("s_add_u32 s25, s42, s43")
    if P.get('badmap'):
        e("s_and_b32 s24, s2, 15"); e("s_lshr_b32 s25, s2, 4")
    e("s_and_b32 s27, s26, 3")
    e("s_lshr_b32 s28, s26, 2")
    e("v_lshlrev_b32 v%d, 4, v%d" % (V_WVO, V_LANE))
    e("v_lshlrev_b32 v%d, 4, v%d" % (V_HVO, V_LANE))
    e("v_add_u32 v%d, 114688, v%d" % (V_HVO + 1, V_HVO))
    e("s_lshl_b32 s44, s26, 12")
    e("s_mul_i32 s41, s25, 458752")
    e("s_add_u32 s29, s44, s41")
    e("s_lshl_b32 s40, s24, 3")
    e("s_lshl_b32 s41, s27, 1")
    e("s_add_u32 s40, s40, s41")
    e("s_mul_i32 s40, s40, 114688")
    e("s_lshl_b32 s41, s28, 10")
    e("s_add_u32 s30, s40, s41")
    e("s_mov_b32 s14, %d" % (0 if (P.get('noload') or P.get('noload_a')) else F * D * 2)); e("s_mov_b32 s15, 0x00020000")
    e("s_mov_b32 s18, %d" % (0 if (P.get('noload') or P.get('noload_b')) else H_BYTES)); e("s_mov_b32 s19, 0x00020000")
    e("s_waitcnt lgkmcnt(0)")
    e("s_mov_b32 s16, s10"); e("s_and_b32 s17, s11, 0xffff")
    e("s_add_u32 s12, s16, %d" % WREL_OFF); e("s_addc_u32 s13, s17, 0")

    def dma4(stage):
        def f():
            if stage >= G2_STAGES: return
            e("s_add_u32 m0, s44, %d" % ((stage % G2_NSLOT) * G2_SLOT))
            e("s_add_u32 s40, s29, %d" % (stage * 32768))
            for j in range(4):
                e("buffer_load_dwordx4 v%d, s[12:15], s40 offen offset:%d lds" % (V_WVO, j * 1024))
                g.vm_issue(('d', stage, j))
        return f
    def dma1(stage, j):
        def f():
            if stage >= G2_STAGES: return
            if j == 0:
                e("s_add_u32 s45, s44, %d" % ((stage % G2_NSLOT) * G2_SLOT))
                e("s_add_u32 s41, s29, %d" % (stage * 32768))
            e("s_mov_b32 m0, s45")
            e("s_nop 0")
            e("buffer_load_dwordx4 v%d, s[12:15], s41 offen offset:%d lds" % (V_WVO, j * 1024))
            g.vm_issue(('d', stage, j))
        return f
    def ldh(u, mi):
        def f():
            if u >= G2_US: return
            r = hf(u, mi)
            if mi == 0 and (u & 1) == 0:
                e("s_add_u32 s31, s30, %d" % (u * 2048))
            e("buffer_load_dwordx4 a[%d:%d], v%d, s[16:19], s31 offen offset:%d" % (r, r + 3, V_HVO + mi, (u & 1) * 2048))
            g.vm_issue(('h', u, mi))
        return f
    def rd_w(u, nj, q):
        def f():
            if u >= G2_US: return
            r = wf(u & 1, nj) + 2 * q
            sl = (u >> 2) % G2_NSLOT
            e("ds_read_b64_tr_b16 a[%d:%d], v%d offset:%d" % (r, r + 1, V_RB + (sl >> 1) * 4 + nj, (sl & 1) * G2_SLOT + ((u & 3) * 64 + 16 * q) * 128))
            g.lg_issue(('w', u, nj, q))
        return f
    hq = list(range(G2_RING - 1))
    for st in range(G2_NSLOT):
        dma4(st)()
        take = hq[:4] if st < G2_NSLOT - 1 else hq
        hq = hq[len(take):]
        for u in take:
            for mi in range(2): ldh(u, mi)()
    e("v_lshrrev_b32 v%d, 3, v%d" % (V_T1, V_LANE))
    e("v_and_b32 v%d, 3, v%d" % (V_T1, V_T1))
    e("v_lshlrev_b32 v%d, 1, v%d" % (V_T1, V_T1))
    e("v_lshrrev_b32 v%d, 2, v%d" % (V_T2, V_LANE))
    e("v_lshlrev_b32 v%d, 7, v%d" % (V_T2, V_T2))
    e("v_and_b32 v%d, 3, v%d" % (V_T3, V_LANE))
    e("v_lshl_add_u32 v%d, v%d, 3, v%d" % (V_T2, V_T3, V_T2))
    e("s_lshl_b32 s40, s28, 12")
    e("v_add_u32 v%d, s40, v%d" % (V_T2, V_T2))
    for nj in range(4):
        e("v_xor_b32 v%d, %d, v%d" % (V_T3, 2 * nj, V_T1))
        e("v_lshl_add_u32 v%d, v%d, 4, v%d" % (V_RB + nj, V_T3, V_T2))
        for sp in range(1, NSP):
            e("v_add_u32 v%d, %d, v%d" % (V_RB + sp * 4 + nj, sp * 65536, V_RB + nj))
    e("s_mov_b32 s20, s6"); e("s_and_b32 s21, s7, 0xffff"); e("s_mov_b32 s22, %d" % (S * D * 2)); e("s_mov_b32 s23, 0x00020000")
    for r in range(ACC, ACC + 32): e("v_mov_b32 v%d, 0" % r)
    g.wait('p0', vm=[('d', 0, j) for j in range(4)])
    e("s_barrier")
    stamp(g, P, 1)
    for nj in range(4):
        for q in range(2): rd_w(0, nj, q)()

    def wstep(u):
        b = u & 1
        last = (u & 3) == 3
        t = u >> 2
        if last and t + 1 < G2_STAGES:
            g.wait(('b', u), vm=[('d', t + 1, j) for j in range(4)] + [('h', u, 0), ('h', u, 1)], lg='all')
            e("s_barrier")
        else:
            g.wait(('w', u), vm=[('h', u, 0), ('h', u, 1)], lg=[('w', u, nj, q) for nj in range(4) for q in range(2)])
        mf = []
        for nj in range(4):
            for mi in range(2):
                a = acc(mi, nj)
                mf.append("v_mfma_f32_16x16x32_bf16 v[%d:%d], a[%d:%d], a[%d:%d], v[%d:%d]" %
                          (a, a + 3, wf(b, nj), wf(b, nj) + 3, hf(u, mi), hf(u, mi) + 3, a, a + 3))
        extra = {}
        reads = [rd_w(u + 1, nj, q) for nj in range(4) for q in range(2)]
        for i, r in enumerate(reads): extra.setdefault(i // P.get('g2_rdper', 1), []).append(r)
        extra.setdefault(P.get('g2_h0', 1), []).append(ldh(u + G2_RING - 1, 0))
        extra.setdefault(P.get('g2_h1', 5), []).append(ldh(u + G2_RING - 1, 1))
        if P.get('g2_spread'):
            tt = (u + 1) >> 2
            j = (u + 1) & 3
            if u >= 3: extra.setdefault(P.get('g2_dpos', 7), []).append(dma1(tt + G2_NSLOT - 2 + 1 - 1 + 1 - 1, j) if False else dma1(tt - 1 + G2_NSLOT, j))
        elif last:
            extra.setdefault(P.get('g2_dpos', 7), []).append(dma4(t + G2_NSLOT))
        interleave(g, mf, extra)
    for u in range(G2_US): wstep(u)
    stamp(g, P, 2)
    e("s_waitcnt vmcnt(0) lgkmcnt(0)")
    e("s_barrier")
    e("s_lshl_b32 s40, s26, 12")
    e("v_lshlrev_b32 v%d, 4, v%d" % (V_T1, V_LANE))
    e("v_add_u32 v%d, s40, v%d" % (V_T2, V_T1))
    e("s_xor_b32 s41, s26, 4")
    e("s_lshl_b32 s41, s41, 12")
    e("v_add_u32 v%d, s41, v%d" % (V_T3, V_T1))
    e("s_nop 7"); e("s_nop 7")
    e("s_cmp_eq_u32 s28, 0")
    e("s_cbranch_scc0 G2_EP1")
    def ep(kh):
        own, snd = kh, 1 - kh
        for nj in range(4):
            a = acc(snd, nj)
            e("ds_write_b128 v%d, v[%d:%d] offset:%d" % (V_T2, a, a + 3, nj * 1024))
        e("s_waitcnt lgkmcnt(0)")
        e("s_barrier")
        for nj in range(4):
            a = acc(snd, nj)
            e("ds_read_b128 v[%d:%d], v%d offset:%d" % (a, a + 3, V_T3, nj * 1024))
        e("v_and_b32 v%d, 15, v%d" % (V_T1, V_LANE))
        e("v_lshrrev_b32 v%d, 4, v%d" % (V_T2, V_LANE))
        e("v_lshlrev_b32 v%d, 3, v%d" % (V_T2, V_T2))
        e("v_lshl_add_u32 v%d, v%d, 11, v%d" % (V_T1, V_T1, V_T2))
        e("s_lshl_b32 s40, s24, 7")
        e("s_lshl_b32 s41, s27, 5")
        e("s_add_u32 s40, s40, s41")
        e("s_add_u32 s40, s40, %d" % (16 * own))
        e("s_lshl_b32 s40, s40, 11")
        e("s_lshl_b32 s41, s25, 7")
        e("s_add_u32 s40, s40, s41")
        e("s_waitcnt lgkmcnt(0)")
        for nj in range(4):
            a = acc(own, nj); r = acc(snd, nj)
            e("v_pk_add_f32 v[%d:%d], v[%d:%d], v[%d:%d]" % (a, a + 1, a, a + 1, r, r + 1))
            e("v_pk_add_f32 v[%d:%d], v[%d:%d], v[%d:%d]" % (a + 2, a + 3, a + 2, a + 3, r + 2, r + 3))
        for nj in range(4):
            a = acc(own, nj)
            e("v_cvt_pk_bf16_f32 v%d, v%d, v%d" % (a, a, a + 1))
            e("v_cvt_pk_bf16_f32 v%d, v%d, v%d" % (a + 1, a + 2, a + 3))
        for nj in range(4):
            a = acc(own, nj)
            e("buffer_store_dwordx2 v[%d:%d], v%d, s[20:23], s40 offen offset:%d" % (a, a + 1, V_T1, nj * 32))
        e("s_branch G2_END")
    ep(0)
    g.label("G2_EP1")
    ep(1)
    g.label("G2_END")
    stamp(g, P, 3)
    if P.get('stamps'): e("s_add_u32 s16, s16, 0x1000000"); e("s_addc_u32 s17, s17, 0")
    stamp_dump(g, P, ("s16", "s17"), 6)
    g.label("G2_EXIT")
    e("s_endpgm")

HEADER = """; Kernarg layout for this problem (56 bytes, ptrs only, base s[0:1]):
; @launch kernel=gemm1_kernel grid=(256,1,1) block=(512,1,1) lds=%d
; @launch kernel=gemm2_kernel grid=(256,1,1) block=(512,1,1) lds=%d
.amdgcn_target "amdgcn-amd-amdhsa--gfx950"
.text
"""
def kd(name, nv, acc_off, ns=64):
    return """.amdhsa_kernel %s
  .amdhsa_next_free_vgpr %d
  .amdhsa_next_free_sgpr %d
  .amdhsa_accum_offset %d
  .amdhsa_group_segment_fixed_size 0
  .amdhsa_kernarg_size 56
  .amdhsa_user_sgpr_count 2
  .amdhsa_user_sgpr_kernarg_segment_ptr 1
  .amdhsa_system_sgpr_workgroup_id_x 1
.end_amdhsa_kernel
""" % (name, nv, ns, acc_off)

def build(P):
    out = [HEADER % (G1_LDS, G2_SLOT * P.get('g2_nslot', 4))]
    for name, fn in (("gemm1_kernel", gemm1), ("gemm2_kernel", gemm2)):
        g = Sim()
        g.nomfma = P.get('nomfma', False)
        g.drop = P.get('drop', ())
        fn(g, P)
        g.emit = True
        fn(g, P)
        out.append(".globl %s\n.p2align 8\n.type %s,@function\n" % (name, name) + "\n".join(g.lines) + "\n")
    out.append('.section .rodata,"a"\n.p2align 6\n' + kd("gemm1_kernel", 256, 160, 96) + ".p2align 6\n" + kd("gemm2_kernel", 64 + P.get("g2_ring", 8) * 8 + 32, 64, 80))
    return "".join(out)

DEFAULT = dict(g1_rd0=0, g1_dma=[3, 12, 20], g2_rdper=2, g2_h0=4, g2_h1=6, g2_dma=[4,5,6,7], wrel=1, g1_pf=0, g1_pfd=2)
if __name__ == "__main__":
    P = dict(DEFAULT)
    for a in sys.argv[2:]:
        k, v = a.split("=")
        P[k] = eval(v)
    txt = build(P)
    path = sys.argv[1] if len(sys.argv) > 1 else "standalone__geglu_ffn__prompt.s"
    open(path, "w").write(txt)
    print("wrote", path, len(txt))
```

```python
import sys

S, D, F = 2048, 1024, 3584
WREL_OFF = 0x1000000
H_BYTES = S * F * 2

class Sim:
    def __init__(self):
        self.emit = False
        self.lines = []
        self.vm = []; self.lg = []
        self.vmN = {}; self.lgN = {}
    def e(self, s):
        if self.emit:
            for sub in getattr(self, 'drop', ()):
                if sub in s: return
            self.lines.append("  " + s)
    def label(self, s):
        if self.emit: self.lines.append(s + ":")
    def vm_issue(self, tag):
        if not self.emit: self.vm.append(tag)
    def lg_issue(self, tag):
        if not self.emit: self.lg.append(tag)
    def _n(self, q, tags):
        idx = -1
        for t in tags:
            for i in range(len(q) - 1, -1, -1):
                if q[i] == t:
                    idx = max(idx, i); break
            else:
                raise KeyError(("tag never issued", t))
        return len(q) - 1 - idx
    def wait(self, site, vm=None, lg=None):
        if not self.emit:
            if vm is not None:
                n = 0 if vm == 'all' else self._n(self.vm, vm)
                self.vmN[site] = min(self.vmN.get(site, 1 << 30), n)
            if lg is not None:
                n = 0 if lg == 'all' else self._n(self.lg, lg)
                self.lgN[site] = min(self.lgN.get(site, 1 << 30), n)
            return
        parts = []
        if vm is not None and self.vmN[site] <= 63: parts.append("vmcnt(%d)" % self.vmN[site])
        if lg is not None: parts.append("lgkmcnt(%d)" % min(self.lgN[site], 15))
        if parts: self.e("s_waitcnt " + " ".join(parts))

def stamp(g, P, idx):
    if P.get('stamps'):
        g.e("s_memtime s[%d:%d]" % (66 + 2 * idx, 67 + 2 * idx))
        if idx == 0: g.e("s_memrealtime s[74:75]")
        if idx == 3: g.e("s_memrealtime s[76:77]")
def stamp_dump(g, P, wsreg, n):
    if not P.get('stamps'): return
    e = g.e
    e("s_waitcnt lgkmcnt(0) vmcnt(0)")
    e("s_add_u32 s60, %s, 0x8000000" % wsreg[0]); e("s_addc_u32 s61, %s, 0" % wsreg[1])
    e("s_mov_b32 s62, 0x1000000"); e("s_mov_b32 s63, 0x00020000")
    e("s_lshl_b32 s64, s2, 3"); e("s_add_u32 s64, s64, s26"); e("s_lshl_b32 s64, s64, 7")
    e("v_mov_b32 v11, 0")
    for i in range(n):
        e("v_mov_b32 v12, s%d" % (66 + 2 * i)); e("v_mov_b32 v13, s%d" % (67 + 2 * i))
        e("buffer_store_dwordx2 v[12:13], v11, s[60:63], s64 offen offset:%d" % (8 * i))
    e("s_waitcnt vmcnt(0)")

def interleave(g, main, extra):
    for f in extra.get(-1, []):
        f()
    for i, m in enumerate(main):
        if not getattr(g, 'nomfma', False): g.e(m)
        for f in extra.get(i, []):
            f()

G1_XSLOT = 32768; G1_NX = 3
G1_WSLOT = 14336; G1_NW = 4
G1_XB = G1_WSLOT * G1_NW
G1_LDS = G1_XB + G1_XSLOT * G1_NX
G1_STEPS = 32

def gemm1(g, P):
    ACC = 16
    NJS = [[0, 1, 2, 3], [4, 5, 6]]
    def acc(var, mi, mat, k): return ACC + ((mi * 2 + mat) * len(NJS[var]) + k) * 4
    T0 = 144
    def xf(b, mi): return b * 48 + mi * 4
    def wf(b, mat, k): return b * 48 + 16 + (mat * 4 + k) * 4
    V_LANE, V_XVO, V_WVO, V_XRB, V_WRB, V_T1, V_T2, V_T3, V_PFX, V_PFW = 1, 2, 6, 7, 11, 12, 13, 14, 15, 0
    e = g.e
    g.label("gemm1_kernel")
    e("s_cmp_ge_u32 s2, 256")
    e("s_cbranch_scc1 G1_EXIT")
    stamp(g, P, 0)
    e("s_load_dwordx4 s[4:7], s[0:1], 0")
    e("s_load_dwordx4 s[8:11], s[0:1], 16")
    e("s_load_dwordx2 s[48:49], s[0:1], 48")
    e("v_lshrrev_b32 v%d, 6, v0" % V_T1)
    e("v_and_b32 v%d, 63, v0" % V_LANE)
    e("s_and_b32 s40, s2, 7")
    e("v_readfirstlane_b32 s26, v%d" % V_T1)
    e("s_lshr_b32 s41, s2, 3")
    e("s_and_b32 s42, s40, 1")
    e("s_lshl_b32 s42, s42, 2")
    e("s_and_b32 s43, s41, 3")
    e("s_add_u32 s24, s42, s43")
    e("s_lshr_b32 s42, s40, 1")
    e("s_lshl_b32 s42, s42, 3")
    e("s_lshr_b32 s43, s41, 2")
    e("s_add_u32 s25, s42, s43")
    e("s_and_b32 s27, s26, 3")
    e("s_lshr_b32 s28, s26, 2")
    e("v_mul_u32_u24 v%d, 37, v%d" % (V_T1, V_LANE))
    e("v_lshrrev_b32 v%d, 9, v%d" % (V_T1, V_T1))
    e("v_mul_u32_u24 v%d, 14, v%d" % (V_T2, V_T1))
    e("v_sub_u32 v%d, v%d, v%d" % (V_T2, V_LANE, V_T2))
    e("v_mul_u32_u24 v%d, 7168, v%d" % (V_T1, V_T1))
    e("v_lshl_add_u32 v%d, v%d, 4, v%d" % (V_WVO, V_T2, V_T1))
    e("v_lshrrev_b32 v%d, 3, v%d" % (V_T1, V_LANE))
    e("v_lshrrev_b32 v%d, 4, v%d" % (V_T2, V_LANE))
    e("v_and_b32 v%d, 7, v%d" % (V_T3, V_LANE))
    e("v_xor_b32 v%d, v%d, v%d" % (V_T2, V_T2, V_T3))
    e("v_lshlrev_b32 v%d, 4, v%d" % (V_T2, V_T2))
    e("v_lshl_add_u32 v%d, v%d, 11, v%d" % (V_XVO, V_T1, V_T2))
    e("v_xor_b32 v%d, 64, v%d" % (V_T1, V_XVO))
    e("v_add_u32 v%d, 16384, v%d" % (V_XVO + 1, V_T1))
    e("v_add_u32 v%d, 32768, v%d" % (V_XVO + 2, V_XVO))
    e("v_add_u32 v%d, 49152, v%d" % (V_XVO + 3, V_T1))
    e("s_lshl_b32 s40, s24, 19")
    e("s_lshl_b32 s41, s26, 16")
    e("s_add_u32 s29, s40, s41")
    e("s_and_b32 s40, s27, 1")
    e("s_lshl_b32 s40, s40, 4")
    e("s_lshr_b32 s41, s27, 1")
    e("s_lshl_b32 s41, s41, 2")
    e("s_add_u32 s40, s40, s41")
    e("s_mul_i32 s40, s40, 7168")
    e("s_mul_i32 s41, s25, 224")
    e("s_add_u32 s31, s40, s41")
    e("s_lshl_b32 s44, s26, 12")
    e("s_add_u32 s44, s44, %d" % G1_XB)
    e("s_mul_i32 s45, s28, 7168")
    e("s_mul_i32 s40, s27, 1792")
    e("s_add_u32 s45, s45, s40")
    e("s_mov_b32 s36, -1"); e("s_mov_b32 s37, 0x00ffffff")
    e("s_mov_b32 s14, %d" % (0 if (P.get('noload') or P.get('noload_a')) else S * D * 2)); e("s_mov_b32 s15, 0x00020000")
    e("s_mov_b32 s18, %d" % (0 if (P.get('noload') or P.get('noload_b')) else D * F * 2)); e("s_mov_b32 s19, 0x00020000")
    e("s_cmp_eq_u32 s28, 0")
    e("s_waitcnt lgkmcnt(0)")
    e("s_cselect_b32 s16, s6, s8"); e("s_cselect_b32 s17, s7, s9"); e("s_and_b32 s17, s17, 0xffff")
    e("s_mov_b32 s12, s4"); e("s_and_b32 s13, s5, 0xffff")

    def dma_x(tile, j):
        def f():
            if tile >= 16: return
            e("s_add_u32 m0, s44, %d" % (((tile % G1_NX) * G1_XSLOT + j * 1024 - tile * 128) & 0xffffffff))
            e("s_nop 0")
            e("buffer_load_dwordx4 v%d, s[12:15], s29 offen offset:%d lds" % (V_XVO + j, tile * 128))
            g.vm_issue(('x', tile, j))
        return f
    def dma_w2(stage):
        def f():
            if stage >= G1_STEPS: return
            e("s_mov_b64 exec, s[36:37]")
            for j in range(2):
                e("s_add_u32 m0, s45, %d" % ((stage % G1_NW) * G1_WSLOT + j * 896))
                e("s_add_u32 s40, s31, %d" % (stage * 32 * 7168 + j * 8 * 7168))
                e("buffer_load_dwordx4 v%d, s[16:19], s40 offen lds" % V_WVO)
                g.vm_issue(('w', stage, j))
            e("s_mov_b64 exec, -1")
        return f
    dma_w2(0)()
    for j in range(4): dma_x(0, j)()
    dma_w2(1)()
    late = [dma_w2(2)] + [dma_x(1, j) for j in range(4)] + [dma_w2(3)] + [dma_x(2, j) for j in range(2)]
    NL = P.get('g1_late', 0)
    for f in late[:len(late) - NL]: f()
    late = late[len(late) - NL:]
    e("v_and_b32 v%d, 15, v%d" % (V_T1, V_LANE))
    e("v_lshrrev_b32 v%d, 1, v%d" % (V_T2, V_T1))
    e("v_lshrrev_b32 v%d, 4, v%d" % (V_T3, V_LANE))
    e("v_xor_b32 v%d, v%d, v%d" % (V_T2, V_T2, V_T3))
    e("v_lshlrev_b32 v%d, 4, v%d" % (V_T2, V_T2))
    e("v_lshl_add_u32 v%d, v%d, 7, v%d" % (V_XRB, V_T1, V_T2))
    e("s_lshl_b32 s40, s27, 13")
    e("s_add_u32 s40, s40, %d" % G1_XB)
    e("v_add_u32 v%d, s40, v%d" % (V_XRB, V_XRB))
    e("v_xor_b32 v%d, 64, v%d" % (V_XRB + 1, V_XRB))
    e("v_add_u32 v%d, 0x10000, v%d" % (V_XRB + 2, V_XRB))
    e("v_add_u32 v%d, 0x10000, v%d" % (V_XRB + 3, V_XRB + 1))
    e("v_lshrrev_b32 v%d, 2, v%d" % (V_T1, V_LANE))
    e("v_mul_u32_u24 v%d, 224, v%d" % (V_T1, V_T1))
    e("v_and_b32 v%d, 3, v%d" % (V_T2, V_LANE))
    e("v_lshl_add_u32 v%d, v%d, 3, v%d" % (V_WRB, V_T2, V_T1))
    e("s_mov_b32 s20, s48"); e("s_and_b32 s21, s49, 0xffff"); e("s_mov_b32 s22, %d" % H_BYTES); e("s_mov_b32 s23, 0x00020000")
    e("v_lshlrev_b32 v%d, 4, v%d" % (V_PFX, V_LANE))
    e("s_mul_i32 s62, s2, 28672")
    e("s_lshl_b32 s40, s26, 12")
    e("s_add_u32 s62, s62, s40")
    e("s_mov_b32 s48, s10"); e("s_and_b32 s49, s11, 0xffff"); e("s_mov_b32 s50, %d" % (F * D * 2)); e("s_mov_b32 s51, 0x00020000")
    CPV = 112
    def wrel_load():
        e("s_mul_i32 s62, s2, 28672")
        e("s_mul_i32 s40, s27, 7168")
        e("s_add_u32 s62, s62, s40")
        e("s_add_u32 s63, s62, 4096")
        for j in range(7):
            e("buffer_load_dwordx4 v[%d:%d], v%d, s[48:51], %s offen offset:%d" % (CPV + 4 * j, CPV + 4 * j + 3, V_PFX, "s62" if j < 4 else "s63", 1024 * (j & 3)))
            g.vm_issue(('cp', j))
    def wrel_store():
        g.wait(('cpw',), vm=[('cp', j) for j in range(7)])
        e("s_add_u32 s84, s20, %d" % WREL_OFF); e("s_addc_u32 s85, s21, 0"); e("s_mov_b32 s86, %d" % (F * D * 2)); e("s_mov_b32 s87, 0x00020000")
        e("v_lshrrev_b32 v%d, 3, v%d" % (V_T1, V_LANE))
        e("s_mov_b32 s40, 458752")
        e("v_mul_lo_u32 v%d, v%d, s40" % (V_T1, V_T1))
        e("v_and_b32 v%d, 7, v%d" % (V_T2, V_LANE))
        e("s_mul_i32 s41, s2, 14")
        e("s_mul_i32 s63, s27, 7")
        for j in range(7):
            e("s_add_u32 s42, s63, %d" % j)
            e("s_and_b32 s62, s42, 1")
            e("s_lshr_b32 s42, s42, 1")
            e("s_add_u32 s43, s41, s42")
            e("s_lshr_b32 s40, s43, 1"); e("s_and_b32 s40, s40, 3"); e("s_lshl_b32 s40, s40, 1")
            e("v_xor_b32 v%d, s40, v%d" % (V_T3, V_T2))
            e("v_lshl_add_u32 v%d, v%d, 4, v%d" % (V_PFW, V_T3, V_T1))
            e("s_lshl_b32 s43, s43, 7")
            e("s_mul_i32 s62, s62, %d" % (8 * 458752))
            e("s_add_u32 s43, s43, s62")
            e("buffer_store_dwordx4 v[%d:%d], v%d, s[84:87], s43 offen%s" % (CPV + 4 * j, CPV + 4 * j + 3, V_PFW, P.get('wst', '')))
            g.vm_issue(('cs', j))
    def rd_x(step, mi):
        def f():
            if step >= G1_STEPS: return
            sl = (step >> 1) % G1_NX
            base = V_XRB + (step & 1) + (2 if sl == 2 else 0)
            off = (sl & 1) * G1_XSLOT * (0 if sl == 2 else 1) + mi * 2048
            e("ds_read_b128 a[%d:%d], v%d offset:%d" % (xf(step & 1, mi), xf(step & 1, mi) + 3, base, off))
            g.lg_issue(('x', step, mi))
        return f
    def rd_w(step, var, mat, k, q):
        def f():
            if step >= G1_STEPS: return
            r = wf(step & 1, mat, k) + 2 * q
            e("ds_read_b64_tr_b16 a[%d:%d], v%d offset:%d" % (r, r + 1, V_WRB, (step % G1_NW) * G1_WSLOT + mat * 7168 + q * 3584 + NJS[var][k] * 32))
            g.lg_issue(('w', step, mat, k, q))
        return f
    for r in range(ACC, ACC + 128): e("v_mov_b32 v%d, 0" % r)
    g.wait('p0', vm=[('w', 0, 0), ('w', 0, 1)] + [('x', 0, j) for j in range(4)])
    e("s_barrier")
    stamp(g, P, 1)
    e("s_cmp_eq_u32 s28, 0")
    e("s_cbranch_scc0 G1_VAR1")

    def reads_for(s, var):
        nk = len(NJS[var])
        return [rd_x(s, mi) for mi in range(4)] + [rd_w(s, var, mat, k, q) for k in range(nk) for mat in range(2) for q in range(2)]
    def step(s, var):
        b = s & 1
        nk = len(NJS[var])
        if s + 1 < G1_STEPS:
            need = [('w', s + 1, 0), ('w', s + 1, 1)] + [('x', (s + 1) >> 1, j) for j in range(4)]
            g.wait(('s', s, var), vm=need, lg='all')
            e("s_barrier")
        else:
            g.wait(('s', s, var), lg='all')
        mf = []
        for k in range(nk):
            for mat in range(2):
                for mi in range(4):
                    a = acc(var, mi, mat, k)
                    mf.append("v_mfma_f32_16x16x32_bf16 v[%d:%d], a[%d:%d], a[%d:%d], v[%d:%d]" %
                              (a, a + 3, wf(b, mat, k), wf(b, mat, k) + 3, xf(b, mi), xf(b, mi) + 3, a, a + 3))
        extra = {}
        for i, r in enumerate(reads_for(s + 1, var)):
            extra.setdefault(P['g1_rd0'] + i, []).append(r)
        dp = P['g1_dma']
        extra.setdefault(dp[0], []).append(dma_w2(s + 4))
        if s & 1:
            T = (s - 1) >> 1
            extra.setdefault(dp[1], []).append(dma_x(T + 3, 0))
            extra.setdefault(dp[2], []).append(dma_x(T + 3, 1))
        else:
            T = (s - 2) >> 1
            extra.setdefault(dp[1], []).append(dma_x(T + 3, 2))
            extra.setdefault(dp[2], []).append(dma_x(T + 3, 3))
        if var == 1 and s == P.get('wrel_step', 18):
            extra.setdefault(dp[2], []).append(wrel_load)
        if var == 1 and s == P.get('wrel_step', 18) + P.get('wrel_gap', 6):
            extra.setdefault(dp[2], []).append(wrel_store)
        interleave(g, mf, extra)

    import struct
    def f2u(x): return struct.unpack("<I", struct.pack("<f", x))[0]
    def variant(var):
        nk = len(NJS[var])
        if P.get('g1_prio') == var: e("s_setprio 1")
        for r in reads_for(0, var): r()
        for f in late: f()
        for s in range(G1_STEPS): step(s, var)
        stamp(g, P, 2)
        C1, C0, ONE = T0, T0 + 2, T0 + 4
        c = -2.0 * 0.7978845608028654 * 1.4426950408889634
        for r in (C1, C1 + 1): e("v_mov_b32 v%d, 0x%08x" % (r, f2u(c * 0.044715)))
        for r in (C0, C0 + 1): e("v_mov_b32 v%d, 0x%08x" % (r, f2u(c)))
        for r in (ONE, ONE + 1): e("v_mov_b32 v%d, 1.0" % r)
        e("v_lshlrev_b32 v%d, 4, v%d" % (V_T1, V_LANE))
        e("s_lshl_b32 s40, s24, 4")
        e("s_lshl_b32 s41, s27, 2")
        e("s_add_u32 s40, s40, s41")
        e("s_mul_i32 s40, s40, 114688")
        e("s_mul_i32 s41, s25, 7")
        e("s_lshr_b32 s42, s41, 1")
        e("s_lshl_b32 s42, s42, 10")
        e("s_add_u32 s52, s40, s42")
        e("s_add_u32 s53, s52, 114688")
        e("s_add_u32 s54, s53, 114688")
        e("s_add_u32 s55, s54, 114688")
        e("s_and_b32 s56, s25, 1")
        e("s_nop 7")
        TT = T0 + 8
        pairs = [(mi, k, hf) for k in range(nk) for mi in range(4) for hf in range(2)]
        def dest(mi, k, hf): return acc(var, mi, 0, 0) + 2 * k + hf
        for b0 in range(0, len(pairs), 4):
            grp = pairs[b0:b0 + 4]
            G_ = [acc(var, mi, 0, k) + 2 * hf for (mi, k, hf) in grp]
            U_ = [acc(var, mi, 1, k) + 2 * hf for (mi, k, hf) in grp]
            for i in range(4):
                t = TT + 2 * i; e("v_pk_mul_f32 v[%d:%d], v[%d:%d], v[%d:%d]" % (t, t + 1, G_[i], G_[i] + 1, G_[i], G_[i] + 1))
            for i in range(4):
                t = TT + 2 * i; e("v_pk_fma_f32 v[%d:%d], v[%d:%d], v[%d:%d], v[%d:%d]" % (t, t + 1, t, t + 1, C1, C1 + 1, C0, C0 + 1))
            for i in range(4):
                t = TT + 2 * i; e("v_pk_mul_f32 v[%d:%d], v[%d:%d], v[%d:%d]" % (t, t + 1, t, t + 1, G_[i], G_[i] + 1))
            for i in range(4):
                t = TT + 2 * i; e("v_exp_f32 v%d, v%d" % (t, t)); e("v_exp_f32 v%d, v%d" % (t + 1, t + 1))
            for i in range(4):
                e("v_pk_mul_f32 v[%d:%d], v[%d:%d], v[%d:%d]" % (U_[i], U_[i] + 1, G_[i], G_[i] + 1, U_[i], U_[i] + 1))
            for i in range(4):
                t = TT + 2 * i; e("v_pk_add_f32 v[%d:%d], v[%d:%d], v[%d:%d]" % (t, t + 1, t, t + 1, ONE, ONE + 1))
            for i in range(4):
                t = TT + 2 * i; e("v_rcp_f32 v%d, v%d" % (t, t)); e("v_rcp_f32 v%d, v%d" % (t + 1, t + 1))
            e("s_nop 0")
            for i in range(4):
                t = TT + 2 * i; e("v_pk_mul_f32 v[%d:%d], v[%d:%d], v[%d:%d]" % (t, t + 1, t, t + 1, U_[i], U_[i] + 1))
            for i, (mi, k, hf) in enumerate(grp):
                t = TT + 2 * i; e("v_cvt_pk_bf16_f32 v%d, v%d, v%d" % (dest(mi, k, hf), t, t + 1))
        e("s_cmp_eq_u32 s56, 0")
        e("s_cbranch_scc0 G1_ODD%d" % var)
        def st4(mi, k, chunk): e("buffer_store_dwordx4 v[%d:%d], v%d, s[20:23], s%d offen offset:%d" % (dest(mi, k, 0), dest(mi, k, 0) + 3, V_T1, 52 + mi, chunk * 1024) + P.get('hst', ''))
        def st2(mi, k, chunk, hi): e("buffer_store_dwordx2 v[%d:%d], v%d, s[20:23], s%d offen offset:%d" % (dest(mi, k, 0), dest(mi, k, 0) + 1, V_T1, 52 + mi, chunk * 1024 + 8 * hi) + P.get('hst', ''))
        for mi in range(4):
            if var == 0: st4(mi, 0, 0); st4(mi, 2, 1)
            else: st4(mi, 0, 2); st2(mi, 2, 3, 0)
        e("s_branch G1_END")
        g.label("G1_ODD%d" % var)
        for mi in range(4):
            if var == 0: st2(mi, 0, 0, 1); st4(mi, 1, 1); st2(mi, 3, 2, 0)
            else: st2(mi, 0, 2, 1); st4(mi, 1, 3)
        e("s_branch G1_END")
    if g.emit:
        variant(0)
        g.label("G1_VAR1")
        variant(1)
    else:
        save_vm, save_lg = list(g.vm), list(g.lg)
        variant(0)
        g.vm, g.lg = save_vm, save_lg
        variant(1)
    g.label("G1_END")
    stamp(g, P, 3)
    stamp_dump(g, P, ("s20", "s21"), 9)
    g.label("G1_EXIT")
    e("s_endpgm")

G2_SLOT = 32768
G2_STAGES = 14
G2_US = 56

def gemm2(g, P):
    e = g.e
    G2_RING = P.get('g2_ring', 8)
    G2_NSLOT = P.get('g2_nslot', 4)
    WF0 = G2_RING * 8
    ACC = 16
    def acc(mi, nj): return ACC + (mi * 4 + nj) * 4
    def hf(u, mi): return (u % G2_RING) * 8 + mi * 4
    def wf(b, nj): return WF0 + b * 16 + nj * 4
    V_LANE, V_WVO, V_HVO, V_T1, V_T2, V_T3 = 1, 2, 3, 5, 6, 7
    V_RB = 48
    NSP = (G2_NSLOT + 1) // 2
    g.label("gemm2_kernel")
    e("s_cmp_ge_u32 s2, 256")
    e("s_cbranch_scc1 G2_EXIT")
    stamp(g, P, 0)
    e("s_load_dwordx2 s[6:7], s[0:1], 32")
    e("s_load_dwordx2 s[10:11], s[0:1], 48")
    e("v_lshrrev_b32 v%d, 6, v0" % V_T1)
    e("v_and_b32 v%d, 63, v0" % V_LANE)
    e("s_and_b32 s40, s2, 7")
    e("v_readfirstlane_b32 s26, v%d" % V_T1)
    e("s_lshr_b32 s41, s2, 3")
    e("s_and_b32 s42, s40, 3")
    e("s_lshl_b32 s42, s42, 2")
    e("s_and_b32 s43, s41, 3")
    e("s_add_u32 s24, s42, s43")
    e("s_lshr_b32 s42, s40, 2")
    e("s_lshl_b32 s42, s42, 3")
    e("s_lshr_b32 s43, s41, 2")
    e("s_add_u32 s25, s42, s43")
    if P.get('badmap'):
        e("s_and_b32 s24, s2, 15"); e("s_lshr_b32 s25, s2, 4")
    e("s_and_b32 s27, s26, 3")
    e("s_lshr_b32 s28, s26, 2")
    e("v_lshlrev_b32 v%d, 4, v%d" % (V_WVO, V_LANE))
    e("v_lshlrev_b32 v%d, 4, v%d" % (V_HVO, V_LANE))
    e("v_add_u32 v%d, 114688, v%d" % (V_HVO + 1, V_HVO))
    e("s_lshl_b32 s44, s26, 12")
    e("s_mul_i32 s41, s25, 458752")
    e("s_add_u32 s29, s44, s41")
    e("s_lshl_b32 s40, s24, 3")
    e("s_lshl_b32 s41, s27, 1")
    e("s_add_u32 s40, s40, s41")
    e("s_mul_i32 s40, s40, 114688")
    e("s_lshl_b32 s41, s28, 10")
    e("s_add_u32 s30, s40, s41")
    e("s_mov_b32 s14, %d" % (0 if (P.get('noload') or P.get('noload_a')) else F * D * 2)); e("s_mov_b32 s15, 0x00020000")
    e("s_mov_b32 s18, %d" % (0 if (P.get('noload') or P.get('noload_b')) else H_BYTES)); e("s_mov_b32 s19, 0x00020000")
    e("s_waitcnt lgkmcnt(0)")
    e("s_mov_b32 s16, s10"); e("s_and_b32 s17, s11, 0xffff")
    e("s_add_u32 s12, s16, %d" % WREL_OFF); e("s_addc_u32 s13, s17, 0")

    def dma4(stage):
        def f():
            if stage >= G2_STAGES: return
            e("s_add_u32 m0, s44, %d" % ((stage % G2_NSLOT) * G2_SLOT))
            e("s_add_u32 s40, s29, %d" % (stage * 32768))
            for j in range(4):
                e("buffer_load_dwordx4 v%d, s[12:15], s40 offen offset:%d lds" % (V_WVO, j * 1024))
                g.vm_issue(('d', stage, j))
        return f
    def dma1(stage, j):
        def f():
            if stage >= G2_STAGES: return
            if j == 0:
                e("s_add_u32 s45, s44, %d" % ((stage % G2_NSLOT) * G2_SLOT))
                e("s_add_u32 s41, s29, %d" % (stage * 32768))
            e("s_mov_b32 m0, s45")
            e("s_nop 0")
            e("buffer_load_dwordx4 v%d, s[12:15], s41 offen offset:%d lds" % (V_WVO, j * 1024))
            g.vm_issue(('d', stage, j))
        return f
    def ldh(u, mi):
        def f():
            if u >= G2_US: return
            r = hf(u, mi)
            if mi == 0 and (u & 1) == 0:
                e("s_add_u32 s31, s30, %d" % (u * 2048))
            e("buffer_load_dwordx4 a[%d:%d], v%d, s[16:19], s31 offen offset:%d" % (r, r + 3, V_HVO + mi, (u & 1) * 2048))
            g.vm_issue(('h', u, mi))
        return f
    def rd_w(u, nj, q):
        def f():
            if u >= G2_US: return
            r = wf(u & 1, nj) + 2 * q
            sl = (u >> 2) % G2_NSLOT
            e("ds_read_b64_tr_b16 a[%d:%d], v%d offset:%d" % (r, r + 1, V_RB + (sl >> 1) * 4 + nj, (sl & 1) * G2_SLOT + ((u & 3) * 64 + 16 * q) * 128))
            g.lg_issue(('w', u, nj, q))
        return f
    hq = list(range(G2_RING - 1))
    for st in range(G2_NSLOT):
        dma4(st)()
        take = hq[:4] if st < G2_NSLOT - 1 else hq
        hq = hq[len(take):]
        for u in take:
            for mi in range(2): ldh(u, mi)()
    e("v_lshrrev_b32 v%d, 3, v%d" % (V_T1, V_LANE))
    e("v_and_b32 v%d, 3, v%d" % (V_T1, V_T1))
    e("v_lshlrev_b32 v%d, 1, v%d" % (V_T1, V_T1))
    e("v_lshrrev_b32 v%d, 2, v%d" % (V_T2, V_LANE))
    e("v_lshlrev_b32 v%d, 7, v%d" % (V_T2, V_T2))
    e("v_and_b32 v%d, 3, v%d" % (V_T3, V_LANE))
    e("v_lshl_add_u32 v%d, v%d, 3, v%d" % (V_T2, V_T3, V_T2))
    e("s_lshl_b32 s40, s28, 12")
    e("v_add_u32 v%d, s40, v%d" % (V_T2, V_T2))
    for nj in range(4):
        e("v_xor_b32 v%d, %d, v%d" % (V_T3, 2 * nj, V_T1))
        e("v_lshl_add_u32 v%d, v%d, 4, v%d" % (V_RB + nj, V_T3, V_T2))
        for sp in range(1, NSP):
            e("v_add_u32 v%d, %d, v%d" % (V_RB + sp * 4 + nj, sp * 65536, V_RB + nj))
    e("s_mov_b32 s20, s6"); e("s_and_b32 s21, s7, 0xffff"); e("s_mov_b32 s22, %d" % (S * D * 2)); e("s_mov_b32 s23, 0x00020000")
    for r in range(ACC, ACC + 32): e("v_mov_b32 v%d, 0" % r)
    g.wait('p0', vm=[('d', 0, j) for j in range(4)])
    e("s_barrier")
    stamp(g, P, 1)
    for nj in range(4):
        for q in range(2): rd_w(0, nj, q)()

    def wstep(u):
        b = u & 1
        last = (u & 3) == 3
        t = u >> 2
        if last and t + 1 < G2_STAGES:
            g.wait(('b', u), vm=[('d', t + 1, j) for j in range(4)] + [('h', u, 0), ('h', u, 1)], lg='all')
            e("s_barrier")
        else:
            g.wait(('w', u), vm=[('h', u, 0), ('h', u, 1)], lg=[('w', u, nj, q) for nj in range(4) for q in range(2)])
        mf = []
        for nj in range(4):
            for mi in range(2):
                a = acc(mi, nj)
                mf.append("v_mfma_f32_16x16x32_bf16 v[%d:%d], a[%d:%d], a[%d:%d], v[%d:%d]" %
                          (a, a + 3, wf(b, nj), wf(b, nj) + 3, hf(u, mi), hf(u, mi) + 3, a, a + 3))
        extra = {}
        reads = [rd_w(u + 1, nj, q) for nj in range(4) for q in range(2)]
        for i, r in enumerate(reads): extra.setdefault(i // P.get('g2_rdper', 1), []).append(r)
        extra.setdefault(P.get('g2_h0', 1), []).append(ldh(u + G2_RING - 1, 0))
        extra.setdefault(P.get('g2_h1', 5), []).append(ldh(u + G2_RING - 1, 1))
        if P.get('g2_spread'):
            tt = (u + 1) >> 2
            j = (u + 1) & 3
            if u >= 3: extra.setdefault(P.get('g2_dpos', 7), []).append(dma1(tt + G2_NSLOT - 2 + 1 - 1 + 1 - 1, j) if False else dma1(tt - 1 + G2_NSLOT, j))
        elif last:
            extra.setdefault(P.get('g2_dpos', 7), []).append(dma4(t + G2_NSLOT))
        interleave(g, mf, extra)
    for u in range(G2_US): wstep(u)
    stamp(g, P, 2)
    e("s_waitcnt vmcnt(0) lgkmcnt(0)")
    e("s_barrier")
    e("s_lshl_b32 s40, s26, 12")
    e("v_lshlrev_b32 v%d, 4, v%d" % (V_T1, V_LANE))
    e("v_add_u32 v%d, s40, v%d" % (V_T2, V_T1))
    e("s_xor_b32 s41, s26, 4")
    e("s_lshl_b32 s41, s41, 12")
    e("v_add_u32 v%d, s41, v%d" % (V_T3, V_T1))
    e("s_nop 7"); e("s_nop 7")
    e("s_cmp_eq_u32 s28, 0")
    e("s_cbranch_scc0 G2_EP1")
    def ep(kh):
        own, snd = kh, 1 - kh
        for nj in range(4):
            a = acc(snd, nj)
            e("ds_write_b128 v%d, v[%d:%d] offset:%d" % (V_T2, a, a + 3, nj * 1024))
        e("s_waitcnt lgkmcnt(0)")
        e("s_barrier")
        for nj in range(4):
            a = acc(snd, nj)
            e("ds_read_b128 v[%d:%d], v%d offset:%d" % (a, a + 3, V_T3, nj * 1024))
        e("v_and_b32 v%d, 15, v%d" % (V_T1, V_LANE))
        e("v_lshrrev_b32 v%d, 4, v%d" % (V_T2, V_LANE))
        e("v_lshlrev_b32 v%d, 3, v%d" % (V_T2, V_T2))
        e("v_lshl_add_u32 v%d, v%d, 11, v%d" % (V_T1, V_T1, V_T2))
        e("s_lshl_b32 s40, s24, 7")
        e("s_lshl_b32 s41, s27, 5")
        e("s_add_u32 s40, s40, s41")
        e("s_add_u32 s40, s40, %d" % (16 * own))
        e("s_lshl_b32 s40, s40, 11")
        e("s_lshl_b32 s41, s25, 7")
        e("s_add_u32 s40, s40, s41")
        e("s_waitcnt lgkmcnt(0)")
        for nj in range(4):
            a = acc(own, nj); r = acc(snd, nj)
            e("v_pk_add_f32 v[%d:%d], v[%d:%d], v[%d:%d]" % (a, a + 1, a, a + 1, r, r + 1))
            e("v_pk_add_f32 v[%d:%d], v[%d:%d], v[%d:%d]" % (a + 2, a + 3, a + 2, a + 3, r + 2, r + 3))
        for nj in range(4):
            a = acc(own, nj)
            e("v_cvt_pk_bf16_f32 v%d, v%d, v%d" % (a, a, a + 1))
            e("v_cvt_pk_bf16_f32 v%d, v%d, v%d" % (a + 1, a + 2, a + 3))
        for nj in range(4):
            a = acc(own, nj)
            e("buffer_store_dwordx2 v[%d:%d], v%d, s[20:23], s40 offen offset:%d" % (a, a + 1, V_T1, nj * 32))
        e("s_branch G2_END")
    ep(0)
    g.label("G2_EP1")
    ep(1)
    g.label("G2_END")
    stamp(g, P, 3)
    if P.get('stamps'): e("s_add_u32 s16, s16, 0x1000000"); e("s_addc_u32 s17, s17, 0")
    stamp_dump(g, P, ("s16", "s17"), 6)
    g.label("G2_EXIT")
    e("s_endpgm")

HEADER = """; Kernarg layout for this problem (56 bytes, ptrs only, base s[0:1]):
; @launch kernel=gemm1_kernel grid=(256,1,1) block=(512,1,1) lds=%d
; @launch kernel=gemm2_kernel grid=(256,1,1) block=(512,1,1) lds=%d
.amdgcn_target "amdgcn-amd-amdhsa--gfx950"
.text
"""
def kd(name, nv, acc_off, ns=64):
    return """.amdhsa_kernel %s
  .amdhsa_next_free_vgpr %d
  .amdhsa_next_free_sgpr %d
  .amdhsa_accum_offset %d
  .amdhsa_group_segment_fixed_size 0
  .amdhsa_kernarg_size 56
  .amdhsa_user_sgpr_count 2
  .amdhsa_user_sgpr_kernarg_segment_ptr 1
  .amdhsa_system_sgpr_workgroup_id_x 1
.end_amdhsa_kernel
""" % (name, nv, ns, acc_off)

def build(P):
    out = [HEADER % (G1_LDS, G2_SLOT * P.get('g2_nslot', 4))]
    for name, fn in (("gemm1_kernel", gemm1), ("gemm2_kernel", gemm2)):
        g = Sim()
        g.nomfma = P.get('nomfma', False)
        g.drop = P.get('drop', ())
        fn(g, P)
        g.emit = True
        fn(g, P)
        out.append(".globl %s\n.p2align 8\n.type %s,@function\n" % (name, name) + "\n".join(g.lines) + "\n")
    out.append('.section .rodata,"a"\n.p2align 6\n' + kd("gemm1_kernel", 256, 160, 96) + ".p2align 6\n" + kd("gemm2_kernel", 64 + P.get("g2_ring", 8) * 8 + 32, 64, 80))
    return "".join(out)

DEFAULT = dict(g1_rd0=0, g1_dma=[3, 12, 20], g2_rdper=2, g2_h0=4, g2_h1=6, g2_dma=[4,5,6,7], wrel=1, g1_pf=0, g1_pfd=2)
if __name__ == "__main__":
    P = dict(DEFAULT)
    for a in sys.argv[2:]:
        k, v = a.split("=")
        P[k] = eval(v)
    txt = build(P)
    path = sys.argv[1] if len(sys.argv) > 1 else "standalone__geglu_ffn__prompt.s"
    open(path, "w").write(txt)
    print("wrote", path, len(txt))
```

```python
import sys

S, D, F = 2048, 1024, 3584
WREL_OFF = 0x1000000
H_BYTES = S * F * 2

class Sim:
    def __init__(self):
        self.emit = False
        self.lines = []
        self.vm = []; self.lg = []
        self.vmN = {}; self.lgN = {}
    def e(self, s):
        if self.emit:
            for sub in getattr(self, 'drop', ()):
                if sub in s: return
            self.lines.append("  " + s)
    def label(self, s):
        if self.emit: self.lines.append(s + ":")
    def vm_issue(self, tag):
        if not self.emit: self.vm.append(tag)
    def lg_issue(self, tag):
        if not self.emit: self.lg.append(tag)
    def _n(self, q, tags):
        idx = -1
        for t in tags:
            for i in range(len(q) - 1, -1, -1):
                if q[i] == t:
                    idx = max(idx, i); break
            else:
                raise KeyError(("tag never issued", t))
        return len(q) - 1 - idx
    def wait(self, site, vm=None, lg=None):
        if not self.emit:
            if vm is not None:
                n = 0 if vm == 'all' else self._n(self.vm, vm)
                self.vmN[site] = min(self.vmN.get(site, 1 << 30), n)
            if lg is not None:
                n = 0 if lg == 'all' else self._n(self.lg, lg)
                self.lgN[site] = min(self.lgN.get(site, 1 << 30), n)
            return
        parts = []
        if vm is not None and self.vmN[site] <= 63: parts.append("vmcnt(%d)" % self.vmN[site])
        if lg is not None: parts.append("lgkmcnt(%d)" % min(self.lgN[site], 15))
        if parts: self.e("s_waitcnt " + " ".join(parts))

def stamp(g, P, idx):
    if P.get('stamps'):
        g.e("s_memtime s[%d:%d]" % (66 + 2 * idx, 67 + 2 * idx))
        if idx == 0: g.e("s_memrealtime s[74:75]")
        if idx == 3: g.e("s_memrealtime s[76:77]")
def stamp_dump(g, P, wsreg, n):
    if not P.get('stamps'): return
    e = g.e
    e("s_waitcnt lgkmcnt(0) vmcnt(0)")
    e("s_add_u32 s60, %s, 0x8000000" % wsreg[0]); e("s_addc_u32 s61, %s, 0" % wsreg[1])
    e("s_mov_b32 s62, 0x1000000"); e("s_mov_b32 s63, 0x00020000")
    e("s_lshl_b32 s64, s2, 3"); e("s_add_u32 s64, s64, s26"); e("s_lshl_b32 s64, s64, 7")
    e("v_mov_b32 v11, 0")
    for i in range(n):
        e("v_mov_b32 v12, s%d" % (66 + 2 * i)); e("v_mov_b32 v13, s%d" % (67 + 2 * i))
        e("buffer_store_dwordx2 v[12:13], v11, s[60:63], s64 offen offset:%d" % (8 * i))
    e("s_waitcnt vmcnt(0)")

def interleave(g, main, extra):
    for f in extra.get(-1, []):
        f()
    for i, m in enumerate(main):
        if not getattr(g, 'nomfma', False): g.e(m)
        for f in extra.get(i, []):
            f()

import os
G1_XSLOT = 32768; G1_NX = int(os.environ.get("G1_NX", "3"))
G1_WSLOT = 14336; G1_NW = int(os.environ.get("G1_NW", "4"))
G1_XB = G1_WSLOT * G1_NW
G1_LDS = G1_XB + G1_XSLOT * G1_NX
G1_STEPS = 32

def gemm1(g, P):
    ACC = 16
    NJS = [[0, 1, 2, 3], [4, 5, 6]]
    def acc(var, mi, mat, k): return ACC + ((mi * 2 + mat) * len(NJS[var]) + k) * 4
    T0 = 144
    def xf(b, mi): return b * 48 + mi * 4
    def wf(b, mat, k): return b * 48 + 16 + (mat * 4 + k) * 4
    V_LANE, V_XVO, V_WVO, V_XRB, V_WRB, V_T1, V_T2, V_T3, V_PFX, V_PFW = 1, 2, 6, 7, 11, 12, 13, 14, 15, 0
    e = g.e
    g.label("gemm1_kernel")
    e("s_cmp_ge_u32 s2, 256")
    e("s_cbranch_scc1 G1_EXIT")
    stamp(g, P, 0)
    e("s_load_dwordx4 s[4:7], s[0:1], 0")
    e("s_load_dwordx4 s[8:11], s[0:1], 16")
    e("s_load_dwordx2 s[48:49], s[0:1], 48")
    e("v_lshrrev_b32 v%d, 6, v0" % V_T1)
    e("v_and_b32 v%d, 63, v0" % V_LANE)
    e("s_and_b32 s40, s2, 7")
    e("v_readfirstlane_b32 s26, v%d" % V_T1)
    e("s_lshr_b32 s41, s2, 3")
    e("s_and_b32 s42, s40, 1")
    e("s_lshl_b32 s42, s42, 2")
    e("s_and_b32 s43, s41, 3")
    e("s_add_u32 s24, s42, s43")
    e("s_lshr_b32 s42, s40, 1")
    e("s_lshl_b32 s42, s42, 3")
    e("s_lshr_b32 s43, s41, 2")
    e("s_add_u32 s25, s42, s43")
    e("s_and_b32 s27, s26, 3")
    e("s_lshr_b32 s28, s26, 2")
    e("v_mul_u32_u24 v%d, 37, v%d" % (V_T1, V_LANE))
    e("v_lshrrev_b32 v%d, 9, v%d" % (V_T1, V_T1))
    e("v_mul_u32_u24 v%d, 14, v%d" % (V_T2, V_T1))
    e("v_sub_u32 v%d, v%d, v%d" % (V_T2, V_LANE, V_T2))
    e("v_mul_u32_u24 v%d, 7168, v%d" % (V_T1, V_T1))
    e("v_lshl_add_u32 v%d, v%d, 4, v%d" % (V_WVO, V_T2, V_T1))
    e("v_lshrrev_b32 v%d, 3, v%d" % (V_T1, V_LANE))
    e("v_lshrrev_b32 v%d, 4, v%d" % (V_T2, V_LANE))
    e("v_and_b32 v%d, 7, v%d" % (V_T3, V_LANE))
    e("v_xor_b32 v%d, v%d, v%d" % (V_T2, V_T2, V_T3))
    e("v_lshlrev_b32 v%d, 4, v%d" % (V_T2, V_T2))
    e("v_lshl_add_u32 v%d, v%d, 11, v%d" % (V_XVO, V_T1, V_T2))
    NX = P.get('g1_xsplit', (4, 4))
    assert NX[0] + NX[1] == 8
    XV = [2, 3, 4, 5, 156, 157, 158][:max(NX)]
    e("s_mul_i32 s40, s27, %d" % NX[0]); e("s_add_u32 s40, s40, %d" % (NX[1] * 4))
    e("s_mul_i32 s41, s27, %d" % NX[1])
    e("s_cmp_eq_u32 s28, 0")
    e("s_cselect_b32 s46, s40, s41")
    e("s_and_b32 s40, s46, 1"); e("s_lshl_b32 s40, s40, 6")
    e("v_xor_b32 v%d, s40, v%d" % (V_T2, V_XVO))
    e("v_xor_b32 v%d, 64, v%d" % (V_T1, V_T2))
    for j in range(max(NX) - 1, -1, -1):
        srcv = V_T1 if j & 1 else V_T2
        if j == 0: e("v_mov_b32 v%d, v%d" % (XV[0], srcv))
        else: e("v_add_u32 v%d, %d, v%d" % (XV[j], j * 16384, srcv))
    e("s_lshl_b32 s40, s24, 19")
    e("s_lshl_b32 s41, s46, 14")
    e("s_add_u32 s29, s40, s41")
    e("s_and_b32 s40, s27, 1")
    e("s_lshl_b32 s40, s40, 4")
    e("s_lshr_b32 s41, s27, 1")
    e("s_lshl_b32 s41, s41, 2")
    e("s_add_u32 s40, s40, s41")
    e("s_mul_i32 s40, s40, 7168")
    e("s_mul_i32 s41, s25, 224")
    e("s_add_u32 s31, s40, s41")
    e("s_lshl_b32 s44, s46, 10")
    e("s_add_u32 s44, s44, %d" % G1_XB)
    e("s_mul_i32 s45, s28, 7168")
    e("s_mul_i32 s40, s27, 1792")
    e("s_add_u32 s45, s45, s40")
    e("s_mov_b32 s36, -1"); e("s_mov_b32 s37, 0x00ffffff")
    e("s_mov_b32 s14, %d" % (0 if (P.get('noload') or P.get('noload_a')) else S * D * 2)); e("s_mov_b32 s15, 0x00020000")
    e("s_mov_b32 s18, %d" % (0 if (P.get('noload') or P.get('noload_b')) else D * F * 2)); e("s_mov_b32 s19, 0x00020000")
    e("s_cmp_eq_u32 s28, 0")
    e("s_waitcnt lgkmcnt(0)")
    e("s_cselect_b32 s16, s6, s8"); e("s_cselect_b32 s17, s7, s9"); e("s_and_b32 s17, s17, 0xffff")
    e("s_mov_b32 s12, s4"); e("s_and_b32 s13, s5, 0xffff")

    def dma_x(tile, j):
        def f():
            if tile >= 16: return
            e("s_add_u32 m0, s44, %d" % (((tile % G1_NX) * G1_XSLOT + j * 1024 - tile * 128) & 0xffffffff))
            e("s_nop 0")
            e("buffer_load_dwordx4 v%d, s[12:15], s29 offen offset:%d lds" % (XV[j], tile * 128))
            g.vm_issue(('x', tile, j))
        return f
    def dma_w2(stage):
        def f():
            if stage >= G1_STEPS: return
            e("s_mov_b64 exec, s[36:37]")
            for j in range(2):
                e("s_add_u32 m0, s45, %d" % ((stage % G1_NW) * G1_WSLOT + j * 896))
                e("s_add_u32 s40, s31, %d" % (stage * 32 * 7168 + j * 8 * 7168))
                e("buffer_load_dwordx4 v%d, s[16:19], s40 offen lds" % V_WVO)
                g.vm_issue(('w', stage, j))
            e("s_mov_b64 exec, -1")
        return f
    XE = P.get('g1_xearly', 0)
    def xs_first(var): return list(range(NX[var])) if XE else list(range((NX[var] + 1) // 2))
    def xs_second(var): return [] if XE else list(range((NX[var] + 1) // 2, NX[var]))
    def prologue_dma(var):
        dma_w2(0)()
        for j in range(NX[var]): dma_x(0, j)()
        dma_w2(1)()
        dma_w2(2)()
        if G1_NX == 3:
            for j in range(NX[var]): dma_x(1, j)()
        else:
            for j in xs_first(var): dma_x(1, j)()
        for st in range(3, G1_NW): dma_w2(st)()
        if G1_NX == 3:
            for j in xs_first(var): dma_x(2, j)()
    late = []
    PV = {}
    if g.emit:
        e("s_cmp_eq_u32 s28, 0")
        e("s_cbranch_scc0 G1_PRO1")
        prologue_dma(0)
        e("s_branch G1_PRODONE")
        g.label("G1_PRO1")
        prologue_dma(1)
        g.label("G1_PRODONE")
    else:
        for var in range(2):
            g.vm = []
            prologue_dma(var)
            PV[var] = list(g.vm)
    e("v_and_b32 v%d, 15, v%d" % (V_T1, V_LANE))
    e("v_lshrrev_b32 v%d, 1, v%d" % (V_T2, V_T1))
    e("v_lshrrev_b32 v%d, 4, v%d" % (V_T3, V_LANE))
    e("v_xor_b32 v%d, v%d, v%d" % (V_T2, V_T2, V_T3))
    e("v_lshlrev_b32 v%d, 4, v%d" % (V_T2, V_T2))
    e("v_lshl_add_u32 v%d, v%d, 7, v%d" % (V_XRB, V_T1, V_T2))
    e("s_lshl_b32 s40, s27, 13")
    e("s_add_u32 s40, s40, %d" % G1_XB)
    e("v_add_u32 v%d, s40, v%d" % (V_XRB, V_XRB))
    e("v_xor_b32 v%d, 64, v%d" % (V_XRB + 1, V_XRB))
    e("v_add_u32 v%d, 0x10000, v%d" % (V_XRB + 2, V_XRB))
    e("v_add_u32 v%d, 0x10000, v%d" % (V_XRB + 3, V_XRB + 1))
    e("v_lshrrev_b32 v%d, 2, v%d" % (V_T1, V_LANE))
    e("v_mul_u32_u24 v%d, 224, v%d" % (V_T1, V_T1))
    e("v_and_b32 v%d, 3, v%d" % (V_T2, V_LANE))
    e("v_lshl_add_u32 v%d, v%d, 3, v%d" % (V_WRB, V_T2, V_T1))
    e("v_add_u32 v159, %d, v%d" % (4 * G1_WSLOT, V_WRB))
    e("s_mov_b32 s20, s48"); e("s_and_b32 s21, s49, 0xffff"); e("s_mov_b32 s22, %d" % H_BYTES); e("s_mov_b32 s23, 0x00020000")
    e("v_lshlrev_b32 v%d, 4, v%d" % (V_PFX, V_LANE))
    e("s_mul_i32 s62, s2, 28672")
    e("s_lshl_b32 s40, s26, 12")
    e("s_add_u32 s62, s62, s40")
    e("s_mov_b32 s48, s10"); e("s_and_b32 s49, s11, 0xffff"); e("s_mov_b32 s50, %d" % (F * D * 2)); e("s_mov_b32 s51, 0x00020000")
    CPV = 112
    def wrel_load():
        e("s_mul_i32 s62, s2, 28672")
        e("s_mul_i32 s40, s27, 7168")
        e("s_add_u32 s62, s62, s40")
        e("s_add_u32 s63, s62, 4096")
        for j in range(7):
            e("buffer_load_dwordx4 v[%d:%d], v%d, s[48:51], %s offen offset:%d" % (CPV + 4 * j, CPV + 4 * j + 3, V_PFX, "s62" if j < 4 else "s63", 1024 * (j & 3)))
            g.vm_issue(('cp', j))
    def wrel_store():
        g.wait(('cpw',), vm=[('cp', j) for j in range(7)])
        e("s_add_u32 s84, s20, %d" % WREL_OFF); e("s_addc_u32 s85, s21, 0"); e("s_mov_b32 s86, %d" % (F * D * 2)); e("s_mov_b32 s87, 0x00020000")
        e("v_lshrrev_b32 v%d, 3, v%d" % (V_T1, V_LANE))
        e("s_mov_b32 s40, 458752")
        e("v_mul_lo_u32 v%d, v%d, s40" % (V_T1, V_T1))
        e("v_and_b32 v%d, 7, v%d" % (V_T2, V_LANE))
        e("s_mul_i32 s41, s2, 14")
        e("s_mul_i32 s63, s27, 7")
        for j in range(7):
            e("s_add_u32 s42, s63, %d" % j)
            e("s_and_b32 s62, s42, 1")
            e("s_lshr_b32 s42, s42, 1")
            e("s_add_u32 s43, s41, s42")
            e("s_lshr_b32 s40, s43, 1"); e("s_and_b32 s40, s40, 3"); e("s_lshl_b32 s40, s40, 1")
            e("v_xor_b32 v%d, s40, v%d" % (V_T3, V_T2))
            e("v_lshl_add_u32 v%d, v%d, 4, v%d" % (V_PFW, V_T3, V_T1))
            e("s_lshl_b32 s43, s43, 7")
            e("s_mul_i32 s62, s62, %d" % (8 * 458752))
            e("s_add_u32 s43, s43, s62")
            e("buffer_store_dwordx4 v[%d:%d], v%d, s[84:87], s43 offen%s" % (CPV + 4 * j, CPV + 4 * j + 3, V_PFW, P.get('wst', '')))
            g.vm_issue(('cs', j))
    def rd_x(step, mi):
        def f():
            if step >= G1_STEPS: return
            sl = (step >> 1) % G1_NX
            base = V_XRB + (step & 1) + (2 if sl == 2 else 0)
            off = (sl & 1) * G1_XSLOT * (0 if sl == 2 else 1) + mi * 2048
            e("ds_read_b128 a[%d:%d], v%d offset:%d" % (xf(step & 1, mi), xf(step & 1, mi) + 3, base, off))
            g.lg_issue(('x', step, mi))
        return f
    def rd_w(step, var, mat, k, q):
        def f():
            if step >= G1_STEPS: return
            r = wf(step & 1, mat, k) + 2 * q
            sl = step % G1_NW
            e("ds_read_b64_tr_b16 a[%d:%d], v%d offset:%d" % (r, r + 1, V_WRB if sl < 4 else 159, (sl & 3) * G1_WSLOT + mat * 7168 + q * 3584 + NJS[var][k] * 32))
            g.lg_issue(('w', step, mat, k, q))
        return f
    for r in range(ACC, ACC + 128): e("v_mov_b32 v%d, 0" % r)
    e("s_cmp_eq_u32 s28, 0")
    e("s_cbranch_scc0 G1_VAR1")

    def reads_for(s, var):
        nk = len(NJS[var])
        return [rd_x(s, mi) for mi in range(4)] + [rd_w(s, var, mat, k, q) for k in range(nk) for mat in range(2) for q in range(2)]
    def step(s, var):
        b = s & 1
        nk = len(NJS[var])
        if s + 1 < G1_STEPS:
            need = [('w', s + 1, 0), ('w', s + 1, 1)] + [('x', (s + 1) >> 1, j) for j in range(NX[var])]
            g.wait(('s', s, var), vm=need, lg='all')
            e("s_barrier")
        else:
            g.wait(('s', s, var), lg='all')
        mf = []
        for k in range(nk):
            for mat in range(2):
                for mi in range(4):
                    a = acc(var, mi, mat, k)
                    mf.append("v_mfma_f32_16x16x32_bf16 v[%d:%d], a[%d:%d], a[%d:%d], v[%d:%d]" %
                              (a, a + 3, wf(b, mat, k), wf(b, mat, k) + 3, xf(b, mi), xf(b, mi) + 3, a, a + 3))
        extra = {}
        for i, r in enumerate(reads_for(s + 1, var)):
            extra.setdefault(P['g1_rd0'] + i, []).append(r)
        dp = P['g1_dma']
        extra.setdefault(dp[0], []).append(dma_w2(s + G1_NW))
        T = (s - 1) >> 1 if s & 1 else (s - 2) >> 1
        js = xs_first(var) if s & 1 else xs_second(var)
        xpos = [dp[1], dp[2], (dp[1] + dp[2]) // 2, dp[2] + 2]
        for i, j in enumerate(js):
            extra.setdefault(sorted(xpos[:len(js)])[i], []).append(dma_x(T + G1_NX, j))
        if var == 1 and s == P.get('wrel_step', 18):
            extra.setdefault(dp[2], []).append(wrel_load)
        if var == 1 and s == P.get('wrel_step', 18) + P.get('wrel_gap', 6):
            extra.setdefault(dp[2], []).append(wrel_store)
        interleave(g, mf, extra)

    import struct
    def f2u(x): return struct.unpack("<I", struct.pack("<f", x))[0]
    def variant(var):
        nk = len(NJS[var])
        if P.get('g1_prio') == var: e("s_setprio 1")
        if not g.emit: g.vm = list(PV[var])
        g.wait(('p0', var), vm=[('w', 0, 0), ('w', 0, 1)] + [('x', 0, j) for j in range(NX[var])])
        e("s_barrier")
        stamp(g, P, 1)
        for r in reads_for(0, var): r()
        for f in late: f()
        for s in range(G1_STEPS): step(s, var)
        stamp(g, P, 2)
        C1, C0, ONE = T0, T0 + 2, T0 + 4
        c = -2.0 * 0.7978845608028654 * 1.4426950408889634
        for r in (C1, C1 + 1): e("v_mov_b32 v%d, 0x%08x" % (r, f2u(c * 0.044715)))
        for r in (C0, C0 + 1): e("v_mov_b32 v%d, 0x%08x" % (r, f2u(c)))
        for r in (ONE, ONE + 1): e("v_mov_b32 v%d, 1.0" % r)
        e("v_lshlrev_b32 v%d, 4, v%d" % (V_T1, V_LANE))
        e("s_lshl_b32 s40, s24, 4")
        e("s_lshl_b32 s41, s27, 2")
        e("s_add_u32 s40, s40, s41")
        e("s_mul_i32 s40, s40, 114688")
        e("s_mul_i32 s41, s25, 7")
        e("s_lshr_b32 s42, s41, 1")
        e("s_lshl_b32 s42, s42, 10")
        e("s_add_u32 s52, s40, s42")
        e("s_add_u32 s53, s52, 114688")
        e("s_add_u32 s54, s53, 114688")
        e("s_add_u32 s55, s54, 114688")
        e("s_and_b32 s56, s25, 1")
        e("s_nop 7")
        TT = T0 + 8
        pairs = [(mi, k, hf) for k in range(nk) for mi in range(4) for hf in range(2)]
        def dest(mi, k, hf): return acc(var, mi, 0, 0) + 2 * k + hf
        for b0 in range(0, len(pairs), 4):
            grp = pairs[b0:b0 + 4]
            G_ = [acc(var, mi, 0, k) + 2 * hf for (mi, k, hf) in grp]
            U_ = [acc(var, mi, 1, k) + 2 * hf for (mi, k, hf) in grp]
            for i in range(4):
                t = TT + 2 * i; e("v_pk_mul_f32 v[%d:%d], v[%d:%d], v[%d:%d]" % (t, t + 1, G_[i], G_[i] + 1, G_[i], G_[i] + 1))
            for i in range(4):
                t = TT + 2 * i; e("v_pk_fma_f32 v[%d:%d], v[%d:%d], v[%d:%d], v[%d:%d]" % (t, t + 1, t, t + 1, C1, C1 + 1, C0, C0 + 1))
            for i in range(4):
                t = TT + 2 * i; e("v_pk_mul_f32 v[%d:%d], v[%d:%d], v[%d:%d]" % (t, t + 1, t, t + 1, G_[i], G_[i] + 1))
            for i in range(4):
                t = TT + 2 * i; e("v_exp_f32 v%d, v%d" % (t, t)); e("v_exp_f32 v%d, v%d" % (t + 1, t + 1))
            for i in range(4):
                e("v_pk_mul_f32 v[%d:%d], v[%d:%d], v[%d:%d]" % (U_[i], U_[i] + 1, G_[i], G_[i] + 1, U_[i], U_[i] + 1))
            for i in range(4):
                t = TT + 2 * i; e("v_pk_add_f32 v[%d:%d], v[%d:%d], v[%d:%d]" % (t, t + 1, t, t + 1, ONE, ONE + 1))
            for i in range(4):
                t = TT + 2 * i; e("v_rcp_f32 v%d, v%d" % (t, t)); e("v_rcp_f32 v%d, v%d" % (t + 1, t + 1))
            e("s_nop 0")
            for i in range(4):
                t = TT + 2 * i; e("v_pk_mul_f32 v[%d:%d], v[%d:%d], v[%d:%d]" % (t, t + 1, t, t + 1, U_[i], U_[i] + 1))
            for i, (mi, k, hf) in enumerate(grp):
                t = TT + 2 * i; e("v_cvt_pk_bf16_f32 v%d, v%d, v%d" % (dest(mi, k, hf), t, t + 1))
        e("s_cmp_eq_u32 s56, 0")
        e("s_cbranch_scc0 G1_ODD%d" % var)
        def st4(mi, k, chunk): e("buffer_store_dwordx4 v[%d:%d], v%d, s[20:23], s%d offen offset:%d" % (dest(mi, k, 0), dest(mi, k, 0) + 3, V_T1, 52 + mi, chunk * 1024) + P.get('hst', ''))
        def st2(mi, k, chunk, hi): e("buffer_store_dwordx2 v[%d:%d], v%d, s[20:23], s%d offen offset:%d" % (dest(mi, k, 0), dest(mi, k, 0) + 1, V_T1, 52 + mi, chunk * 1024 + 8 * hi) + P.get('hst', ''))
        for mi in range(4):
            if var == 0: st4(mi, 0, 0); st4(mi, 2, 1)
            else: st4(mi, 0, 2); st2(mi, 2, 3, 0)
        e("s_branch G1_END")
        g.label("G1_ODD%d" % var)
        for mi in range(4):
            if var == 0: st2(mi, 0, 0, 1); st4(mi, 1, 1); st2(mi, 3, 2, 0)
            else: st2(mi, 0, 2, 1); st4(mi, 1, 3)
        e("s_branch G1_END")
    if g.emit:
        variant(0)
        g.label("G1_VAR1")
        variant(1)
    else:
        save_vm, save_lg = list(g.vm), list(g.lg)
        variant(0)
        g.vm, g.lg = save_vm, save_lg
        variant(1)
    g.label("G1_END")
    stamp(g, P, 3)
    stamp_dump(g, P, ("s20", "s21"), 9)
    g.label("G1_EXIT")
    e("s_endpgm")

G2_SLOT = 32768
G2_STAGES = 14
G2_US = 56

def gemm2(g, P):
    e = g.e
    G2_RING = P.get('g2_ring', 8)
    G2_NSLOT = P.get('g2_nslot', 4)
    WF0 = G2_RING * 8
    ACC = 16
    def acc(mi, nj): return ACC + (mi * 4 + nj) * 4
    def hf(u, mi): return (u % G2_RING) * 8 + mi * 4
    def wf(b, nj): return WF0 + b * 16 + nj * 4
    V_LANE, V_WVO, V_HVO, V_T1, V_T2, V_T3 = 1, 2, 3, 5, 6, 7
    V_RB = 48
    NSP = (G2_NSLOT + 1) // 2
    g.label("gemm2_kernel")
    e("s_cmp_ge_u32 s2, 256")
    e("s_cbranch_scc1 G2_EXIT")
    stamp(g, P, 0)
    e("s_load_dwordx2 s[6:7], s[0:1], 32")
    e("s_load_dwordx2 s[10:11], s[0:1], 48")
    e("v_lshrrev_b32 v%d, 6, v0" % V_T1)
    e("v_and_b32 v%d, 63, v0" % V_LANE)
    e("s_and_b32 s40, s2, 7")
    e("v_readfirstlane_b32 s26, v%d" % V_T1)
    e("s_lshr_b32 s41, s2, 3")
    e("s_and_b32 s42, s40, 3")
    e("s_lshl_b32 s42, s42, 2")
    e("s_and_b32 s43, s41, 3")
    e("s_add_u32 s24, s42, s43")
    e("s_lshr_b32 s42, s40, 2")
    e("s_lshl_b32 s42, s42, 3")
    e("s_lshr_b32 s43, s41, 2")
    e("s_add_u32 s25, s42, s43")
    if P.get('badmap'):
        e("s_and_b32 s24, s2, 15"); e("s_lshr_b32 s25, s2, 4")
    e("s_and_b32 s27, s26, 3")
    e("s_lshr_b32 s28, s26, 2")
    e("v_lshlrev_b32 v%d, 4, v%d" % (V_WVO, V_LANE))
    e("v_lshlrev_b32 v%d, 4, v%d" % (V_HVO, V_LANE))
    e("v_add_u32 v%d, 114688, v%d" % (V_HVO + 1, V_HVO))
    e("s_lshl_b32 s44, s26, 12")
    e("s_mul_i32 s41, s25, 458752")
    e("s_add_u32 s29, s44, s41")
    e("s_lshl_b32 s40, s24, 3")
    e("s_lshl_b32 s41, s27, 1")
    e("s_add_u32 s40, s40, s41")
    e("s_mul_i32 s40, s40, 114688")
    e("s_lshl_b32 s41, s28, 10")
    e("s_add_u32 s30, s40, s41")
    e("s_mov_b32 s14, %d" % (0 if (P.get('noload') or P.get('noload_a')) else F * D * 2)); e("s_mov_b32 s15, 0x00020000")
    e("s_mov_b32 s18, %d" % (0 if (P.get('noload') or P.get('noload_b')) else H_BYTES)); e("s_mov_b32 s19, 0x00020000")
    e("s_waitcnt lgkmcnt(0)")
    e("s_mov_b32 s16, s10"); e("s_and_b32 s17, s11, 0xffff")
    e("s_add_u32 s12, s16, %d" % WREL_OFF); e("s_addc_u32 s13, s17, 0")

    def dma4(stage):
        def f():
            if stage >= G2_STAGES: return
            e("s_add_u32 m0, s44, %d" % ((stage % G2_NSLOT) * G2_SLOT))
            e("s_add_u32 s40, s29, %d" % (stage * 32768))
            for j in range(4):
                e("buffer_load_dwordx4 v%d, s[12:15], s40 offen offset:%d lds" % (V_WVO, j * 1024))
                g.vm_issue(('d', stage, j))
        return f
    def dma1(stage, j):
        def f():
            if stage >= G2_STAGES: return
            if j == 0:
                e("s_add_u32 s45, s44, %d" % ((stage % G2_NSLOT) * G2_SLOT))
                e("s_add_u32 s41, s29, %d" % (stage * 32768))
            e("s_mov_b32 m0, s45")
            e("s_nop 0")
            e("buffer_load_dwordx4 v%d, s[12:15], s41 offen offset:%d lds" % (V_WVO, j * 1024))
            g.vm_issue(('d', stage, j))
        return f
    def ldh(u, mi):
        def f():
            if u >= G2_US: return
            r = hf(u, mi)
            if mi == 0 and (u & 1) == 0:
                e("s_add_u32 s31, s30, %d" % (u * 2048))
            e("buffer_load_dwordx4 a[%d:%d], v%d, s[16:19], s31 offen offset:%d" % (r, r + 3, V_HVO + mi, (u & 1) * 2048))
            g.vm_issue(('h', u, mi))
        return f
    def rd_w(u, nj, q):
        def f():
            if u >= G2_US: return
            r = wf(u & 1, nj) + 2 * q
            sl = (u >> 2) % G2_NSLOT
            e("ds_read_b64_tr_b16 a[%d:%d], v%d offset:%d" % (r, r + 1, V_RB + (sl >> 1) * 4 + nj, (sl & 1) * G2_SLOT + ((u & 3) * 64 + 16 * q) * 128))
            g.lg_issue(('w', u, nj, q))
        return f
    hq = list(range(G2_RING - 1))
    for st in range(G2_NSLOT):
        dma4(st)()
        take = hq[:4] if st < G2_NSLOT - 1 else hq
        hq = hq[len(take):]
        for u in take:
            for mi in range(2): ldh(u, mi)()
    e("v_lshrrev_b32 v%d, 3, v%d" % (V_T1, V_LANE))
    e("v_and_b32 v%d, 3, v%d" % (V_T1, V_T1))
    e("v_lshlrev_b32 v%d, 1, v%d" % (V_T1, V_T1))
    e("v_lshrrev_b32 v%d, 2, v%d" % (V_T2, V_LANE))
    e("v_lshlrev_b32 v%d, 7, v%d" % (V_T2, V_T2))
    e("v_and_b32 v%d, 3, v%d" % (V_T3, V_LANE))
    e("v_lshl_add_u32 v%d, v%d, 3, v%d" % (V_T2, V_T3, V_T2))
    e("s_lshl_b32 s40, s28, 12")
    e("v_add_u32 v%d, s40, v%d" % (V_T2, V_T2))
    for nj in range(4):
        e("v_xor_b32 v%d, %d, v%d" % (V_T3, 2 * nj, V_T1))
        e("v_lshl_add_u32 v%d, v%d, 4, v%d" % (V_RB + nj, V_T3, V_T2))
        for sp in range(1, NSP):
            e("v_add_u32 v%d, %d, v%d" % (V_RB + sp * 4 + nj, sp * 65536, V_RB + nj))
    e("s_mov_b32 s20, s6"); e("s_and_b32 s21, s7, 0xffff"); e("s_mov_b32 s22, %d" % (S * D * 2)); e("s_mov_b32 s23, 0x00020000")
    for r in range(ACC, ACC + 32): e("v_mov_b32 v%d, 0" % r)
    g.wait('p0', vm=[('d', 0, j) for j in range(4)])
    e("s_barrier")
    stamp(g, P, 1)
    for nj in range(4):
        for q in range(2): rd_w(0, nj, q)()

    def wstep(u):
        b = u & 1
        last = (u & 3) == 3
        t = u >> 2
        if last and t + 1 < G2_STAGES:
            g.wait(('b', u), vm=[('d', t + 1, j) for j in range(4)] + [('h', u, 0), ('h', u, 1)], lg='all')
            e("s_barrier")
        else:
            g.wait(('w', u), vm=[('h', u, 0), ('h', u, 1)], lg=[('w', u, nj, q) for nj in range(4) for q in range(2)])
        mf = []
        for nj in range(4):
            for mi in range(2):
                a = acc(mi, nj)
                mf.append("v_mfma_f32_16x16x32_bf16 v[%d:%d], a[%d:%d], a[%d:%d], v[%d:%d]" %
                          (a, a + 3, wf(b, nj), wf(b, nj) + 3, hf(u, mi), hf(u, mi) + 3, a, a + 3))
        extra = {}
        reads = [rd_w(u + 1, nj, q) for nj in range(4) for q in range(2)]
        for i, r in enumerate(reads): extra.setdefault(i // P.get('g2_rdper', 1), []).append(r)
        extra.setdefault(P.get('g2_h0', 1), []).append(ldh(u + G2_RING - 1, 0))
        extra.setdefault(P.get('g2_h1', 5), []).append(ldh(u + G2_RING - 1, 1))
        if P.get('g2_spread'):
            tt = (u + 1) >> 2
            j = (u + 1) & 3
            if u >= 3: extra.setdefault(P.get('g2_dpos', 7), []).append(dma1(tt + G2_NSLOT - 2 + 1 - 1 + 1 - 1, j) if False else dma1(tt - 1 + G2_NSLOT, j))
        elif last:
            extra.setdefault(P.get('g2_dpos', 7), []).append(dma4(t + G2_NSLOT))
        interleave(g, mf, extra)
    for u in range(G2_US): wstep(u)
    stamp(g, P, 2)
    e("s_waitcnt vmcnt(0) lgkmcnt(0)")
    e("s_barrier")
    e("s_lshl_b32 s40, s26, 12")
    e("v_lshlrev_b32 v%d, 4, v%d" % (V_T1, V_LANE))
    e("v_add_u32 v%d, s40, v%d" % (V_T2, V_T1))
    e("s_xor_b32 s41, s26, 4")
    e("s_lshl_b32 s41, s41, 12")
    e("v_add_u32 v%d, s41, v%d" % (V_T3, V_T1))
    e("s_nop 7"); e("s_nop 7")
    e("s_cmp_eq_u32 s28, 0")
    e("s_cbranch_scc0 G2_EP1")
    def ep(kh):
        own, snd = kh, 1 - kh
        for nj in range(4):
            a = acc(snd, nj)
            e("ds_write_b128 v%d, v[%d:%d] offset:%d" % (V_T2, a, a + 3, nj * 1024))
        e("s_waitcnt lgkmcnt(0)")
        e("s_barrier")
        for nj in range(4):
            a = acc(snd, nj)
            e("ds_read_b128 v[%d:%d], v%d offset:%d" % (a, a + 3, V_T3, nj * 1024))
        e("v_and_b32 v%d, 15, v%d" % (V_T1, V_LANE))
        e("v_lshrrev_b32 v%d, 4, v%d" % (V_T2, V_LANE))
        e("v_lshlrev_b32 v%d, 3, v%d" % (V_T2, V_T2))
        e("v_lshl_add_u32 v%d, v%d, 11, v%d" % (V_T1, V_T1, V_T2))
        e("s_lshl_b32 s40, s24, 7")
        e("s_lshl_b32 s41, s27, 5")
        e("s_add_u32 s40, s40, s41")
        e("s_add_u32 s40, s40, %d" % (16 * own))
        e("s_lshl_b32 s40, s40, 11")
        e("s_lshl_b32 s41, s25, 7")
        e("s_add_u32 s40, s40, s41")
        e("s_waitcnt lgkmcnt(0)")
        for nj in range(4):
            a = acc(own, nj); r = acc(snd, nj)
            e("v_pk_add_f32 v[%d:%d], v[%d:%d], v[%d:%d]" % (a, a + 1, a, a + 1, r, r + 1))
            e("v_pk_add_f32 v[%d:%d], v[%d:%d], v[%d:%d]" % (a + 2, a + 3, a + 2, a + 3, r + 2, r + 3))
        for nj in range(4):
            a = acc(own, nj)
            e("v_cvt_pk_bf16_f32 v%d, v%d, v%d" % (a, a, a + 1))
            e("v_cvt_pk_bf16_f32 v%d, v%d, v%d" % (a + 1, a + 2, a + 3))
        for nj in range(4):
            a = acc(own, nj)
            e("buffer_store_dwordx2 v[%d:%d], v%d, s[20:23], s40 offen offset:%d" % (a, a + 1, V_T1, nj * 32))
        e("s_branch G2_END")
    ep(0)
    g.label("G2_EP1")
    ep(1)
    g.label("G2_END")
    stamp(g, P, 3)
    if P.get('stamps'): e("s_add_u32 s16, s16, 0x1000000"); e("s_addc_u32 s17, s17, 0")
    stamp_dump(g, P, ("s16", "s17"), 6)
    g.label("G2_EXIT")
    e("s_endpgm")

HEADER = """; Kernarg layout for this problem (56 bytes, ptrs only, base s[0:1]):
; @launch kernel=gemm1_kernel grid=(256,1,1) block=(512,1,1) lds=%d
; @launch kernel=gemm2_kernel grid=(256,1,1) block=(512,1,1) lds=%d
.amdgcn_target "amdgcn-amd-amdhsa--gfx950"
.text
"""
def kd(name, nv, acc_off, ns=64):
    return """.amdhsa_kernel %s
  .amdhsa_next_free_vgpr %d
  .amdhsa_next_free_sgpr %d
  .amdhsa_accum_offset %d
  .amdhsa_group_segment_fixed_size 0
  .amdhsa_kernarg_size 56
  .amdhsa_user_sgpr_count 2
  .amdhsa_user_sgpr_kernarg_segment_ptr 1
  .amdhsa_system_sgpr_workgroup_id_x 1
.end_amdhsa_kernel
""" % (name, nv, ns, acc_off)

def build(P):
    out = [HEADER % (G1_LDS, G2_SLOT * P.get('g2_nslot', 4))]
    for name, fn in (("gemm1_kernel", gemm1), ("gemm2_kernel", gemm2)):
        g = Sim()
        g.nomfma = P.get('nomfma', False)
        g.drop = P.get('drop', ())
        fn(g, P)
        g.emit = True
        fn(g, P)
        out.append(".globl %s\n.p2align 8\n.type %s,@function\n" % (name, name) + "\n".join(g.lines) + "\n")
    out.append('.section .rodata,"a"\n.p2align 6\n' + kd("gemm1_kernel", 256, 160, 96) + ".p2align 6\n" + kd("gemm2_kernel", 64 + P.get("g2_ring", 8) * 8 + 32, 64, 80))
    return "".join(out)

DEFAULT = dict(g1_rd0=0, g1_dma=[3, 12, 20], g2_rdper=2, g2_h0=4, g2_h1=6, g2_dma=[4,5,6,7], wrel=1, g1_pf=0, g1_pfd=2)
if __name__ == "__main__":
    P = dict(DEFAULT)
    for a in sys.argv[2:]:
        k, v = a.split("=")
        P[k] = eval(v)
    txt = build(P)
    path = sys.argv[1] if len(sys.argv) > 1 else "standalone__geglu_ffn__prompt.s"
    open(path, "w").write(txt)
    print("wrote", path, len(txt))
```
